```python
import torch

def _softmax(x, axis=-1):
    return torch.softmax(x, dim=axis)
def _gelu(x):
    return torch.nn.functional.gelu(x, approximate="tanh")
def _silu(x):
    return torch.nn.functional.silu(x)
def _sigmoid(x):
    return torch.sigmoid(x)
def _layernorm(x, axis=-1, eps=1e-5):
    m = x.mean(dim=axis, keepdim=True)
    v = x.var(dim=axis, keepdim=True, unbiased=False)
    return (x - m) / torch.sqrt(v + eps)
def _scatter_add(tgt, idx, src, axis=0):
    return tgt.clone().index_add_(axis, idx, src)
def _segment_sum(src, seg, n):
    out = torch.zeros((n,) + src.shape[1:], dtype=src.dtype)
    return out.index_add_(0, seg, src)
def _pad(x, pw):
    flat = tuple(v for pair in reversed(pw) for v in pair)
    return torch.nn.functional.pad(x, flat)

kernel_name = 'interleave_layers__spectral_gfnet__dense_activation_gelu__prompt'

def setup_inputs():

    _w = (lambda a: (lambda t: t.to(torch.bfloat16) if t.is_floating_point() else t)(torch.as_tensor(a)))
    def _A_setup():
        B, S, D = 1, 2048, 1024
        Df = D // 2 + 1
        return {
            "x": _w((lambda *s: torch.randn(*s, dtype=torch.bfloat16) * 0.05)(B, S, D)),
            "w_r": _w((lambda *s: torch.randn(*s, dtype=torch.bfloat16) * 0.4)(S, Df) * 0.02),
            "w_i": _w((lambda *s: torch.randn(*s, dtype=torch.bfloat16) * 0.4)(S, Df) * 0.02),
        }
    _A_in = _A_setup()

    def _B_setup():
        B, S, D, F = 1, 2048, 1024, 3584
        return {
            "x": _w((lambda *s: torch.randn(*s, dtype=torch.bfloat16) * 0.05)(B, S, D)),
            "w1": _w((lambda *s: torch.randn(*s, dtype=torch.bfloat16) * 0.4)(D, F) * (D ** -0.5)),
            "b1": _w((lambda *s: torch.randn(*s, dtype=torch.bfloat16) * 12.8)(F) * 0.01),
            "w2": _w((lambda *s: torch.randn(*s, dtype=torch.bfloat16) * 0.1)(F, D) * (F ** -0.5)),
            "b2": _w((lambda *s: torch.randn(*s, dtype=torch.bfloat16) * 0.8)(D) * 0.01),
        }
    _B_in = _B_setup()

    return {
        "A_x": _A_in["x"],
        "A_w_r": _A_in["w_r"],
        "A_w_i": _A_in["w_i"],
        "B_x": _B_in["x"],
        "B_w1": _B_in["w1"],
        "B_b1": _B_in["b1"],
        "B_w2": _B_in["w2"],
        "B_b2": _B_in["b2"],
    }

def reference(A_x, A_w_r, A_w_i, B_x, B_w1, B_b1, B_w2, B_b2):
    def _A_ref(x, w_r, w_i):
        B, S, D = x.shape
        X = (lambda x, axes=(-2,-1): torch.fft.rfft2(x.float(), dim=axes))(x, axes=(-2, -1))
        W = w_r + 1j * w_i
        X = X * W
        y = (lambda x, s, axes=(-2,-1): torch.fft.irfft2(x, s=s, dim=axes).to(torch.bfloat16))(X, (S, D), axes=(-2, -1))
        return y

    def _B_ref(x, w1, b1, w2, b2):
        h = torch.einsum("bsd,df->bsf", x, w1) + b1
        h = _gelu(h)
        return torch.einsum("bsf,fd->bsd", h, w2) + b2

    x = A_x
    x = x + _A_ref(_layernorm(x, axis=-1), A_w_r, A_w_i)
    x = x + _B_ref(_layernorm(x, axis=-1), B_w1, B_b1, B_w2, B_b2)
    x = x + _A_ref(_layernorm(x, axis=-1), A_w_r, A_w_i)
    x = x + _B_ref(_layernorm(x, axis=-1), B_w1, B_b1, B_w2, B_b2)
    return x
```

```python
import re

TRANS = ('v_exp_f32', 'v_log_f32', 'v_rcp_f32', 'v_rsq_f32', 'v_sqrt_f32', 'v_sin_f32', 'v_cos_f32', 'v_rcp_iflag_f32')
REG_RE = re.compile(r'^(-|abs\()?([vas])(?:(\d+)|\[(\d+):(\d+)\])\)?$')

def regs_of(tok):
    tok = tok.strip()
    if tok in ('vcc', 'exec', 'm0', 'vcc_lo', 'vcc_hi', 'exec_lo', 'exec_hi', 'scc'):
        return {tok.split('_')[0]}
    m = REG_RE.match(tok)
    if not m: return set()
    k = m.group(2)
    if m.group(3) is not None: return {f"{k}{m.group(3)}"}
    return {f"{k}{i}" for i in range(int(m.group(4)), int(m.group(5)) + 1)}

def split_ops(s):
    out, depth, cur = [], 0, ''
    for ch in s:
        if ch == '[': depth += 1
        if ch == ']': depth -= 1
        if ch == ',' and depth == 0:
            out.append(cur.strip()); cur = ''
        else: cur += ch
    if cur.strip(): out.append(cur.strip())
    return out

class Ins:
    def __init__(self, text):
        self.text = text
        t = text.split(';')[0].strip()
        self.label = t[:-1] if t.endswith(':') else None
        self.op = ''
        self.defs, self.uses = set(), set()
        self.kind = 'other'
        self.states = 1
        self.srcC = set(); self.srcAB = set(); self.passes = 0
        self.dpp = False; self.storedata = set(); self.lds_dma = False
        self.target = None
        if self.label or not t or t.startswith('.'):
            self.states = 0; self.kind = 'none'; return
        parts = t.split(None, 1)
        op = self.op = parts[0]
        rest = parts[1] if len(parts) > 1 else ''
        ops = split_ops(rest)
        mods = ''
        if ops:
            sp = ops[-1].split(None, 1)
            if len(sp) > 1: ops[-1] = sp[0]; mods = sp[1]
        self.mods = mods
        R = [regs_of(o) for o in ops]
        U = lambda l: set().union(*l) if l else set()
        if op == 's_nop':
            self.states = int(ops[0], 0) + 1; self.kind = 'nop'
        elif op.startswith('v_mfma'):
            self.kind = 'mfma'
            self.passes = 8 if '32x32x16' in op else 4
            assert '32x32x16' in op or '16x16x32' in op
            self.defs = R[0]; self.srcAB = R[1] | R[2]; self.srcC = R[3]; self.uses = self.srcAB | self.srcC
        elif op.startswith('v_'):
            self.kind = 'valu'
            base = op.replace('_e32', '').replace('_e64', '').replace('_dpp', '').replace('_sdwa', '')
            self.base = base
            self.dpp = 'dpp' in op or 'row_' in mods or 'quad_perm' in mods
            if base in ('v_swap_b32', 'v_permlane32_swap_b32', 'v_permlane16_swap_b32'):
                self.defs = R[0] | R[1]; self.uses = R[0] | R[1]
            elif base.startswith('v_cmpx'):
                self.defs = R[0] | {'exec'}; self.uses = U(R[1:])
            elif base in ('v_add_co_u32', 'v_sub_co_u32', 'v_addc_co_u32', 'v_subb_co_u32'):
                self.defs = R[0] | R[1]; self.uses = U(R[2:])
            else:
                self.defs = R[0]; self.uses = U(R[1:])
                if base in ('v_fmac_f32', 'v_dot2c_f32_bf16', 'v_writelane_b32', 'v_pk_fmac_f16') or self.dpp or 'sdwa' in op:
                    self.uses |= R[0]
            self.trans = base in TRANS
        elif op.startswith('ds_'):
            self.kind = 'mem'
            if op.startswith('ds_read') or op.startswith('ds_bpermute') or op.startswith('ds_swizzle') or op.startswith('ds_permute'):
                self.defs = R[0]; self.uses = U(R[1:])
                if 'd16' in op: self.uses |= R[0]
            else:
                self.uses = U(R)
        elif op.startswith('buffer_') or op.startswith('global_'):
            self.kind = 'mem'
            islds = (' lds' in (' ' + mods)) or '_lds_' in op
            if islds:
                self.lds_dma = True; self.uses = U(R) | {'m0'}
            elif '_load' in op:
                self.defs = R[0]; self.uses = U(R[1:])
            else:
                self.uses = U(R)
                if 'x4' in op or 'x3' in op:
                    self.storedata = R[0] if op.startswith('buffer_') else R[1]
            self.vmem = True
        elif op.startswith('s_'):
            self.kind = 'salu'
            if op.startswith('s_cbranch') or op == 's_branch':
                self.target = ops[0]
            elif op.startswith('s_cmp') or op in ('s_waitcnt', 's_barrier', 's_endpgm', 's_setprio', 's_sleep'):
                self.uses = U(R)
            else:
                self.defs = R[0] if R else set(); self.uses = U(R[1:])
                if 'saveexec' in op: self.defs |= {'exec'}
        else:
            raise ValueError("unknown instr " + text)

def isv(s): return {r for r in s if r[0] in 'va' and r not in ('vcc',)}
def iss(s): return {r for r in s if r[0] == 's' or r in ('vcc',)}

def need(p, c):
    n = 0
    if p.kind == 'valu':
        dv = isv(p.defs); ds = iss(p.defs)
        if c.kind == 'mfma' and dv & c.uses: n = max(n, 2)
        if c.kind == 'valu':
            if c.dpp and dv & c.uses: n = max(n, 2)
            if c.base.startswith('v_permlane') and dv & c.uses: n = max(n, 2)
            if c.base in ('v_readlane_b32', 'v_readfirstlane_b32') and dv & c.uses: n = max(n, 1)
            if p.trans and not c.trans and dv & c.uses: n = max(n, 1)
            if p.trans and c.trans and dv & c.uses: n = max(n, 1)
            if ds & c.uses:
                n = max(n, 4 if c.base in ('v_readlane_b32', 'v_writelane_b32') else 2)
            if ('sdwa' in p.op or 'op_sel' in p.mods and not p.base.startswith('v_pk_')) and dv & (c.uses | c.defs): n = max(n, 1)
            if 'exec' in p.defs: n = max(n, 5 if c.dpp else 4)
        if p.base.startswith('v_dot2') and c.kind in ('valu', 'mem', 'mfma') and dv & (c.uses | c.defs):
            same_acc = c.kind == 'valu' and c.base == p.base and c.defs == p.defs
            if not same_acc: n = max(n, 3)
        if c.kind == 'mfma' and 'exec' in p.defs: n = max(n, 4)
        if c.kind == 'mem' and ds & c.uses: n = max(n, 5)
        if c.kind == 'salu' and ds & c.uses: n = max(n, 1)
        if c.kind == 'mem' and p.trans and dv & c.uses: n = max(n, 1)
    elif p.kind == 'mfma':
        big = p.passes == 8
        if c.kind == 'mfma':
            if p.defs & c.srcAB: n = max(n, 12 if big else 8)
            if p.defs & c.srcC:
                if not (p.defs == c.srcC and p.passes == c.passes): n = max(n, 10 if big else 6)
            if p.defs & c.defs and not (p.defs == c.srcC and p.passes == c.passes): n = max(n, 10 if big else 6)
        elif c.kind in ('valu', 'mem'):
            if p.defs & (c.uses | c.defs): n = max(n, 12 if big else 8)
            if p.srcC & c.defs: n = max(n, 7 if big else 3)
    elif p.kind == 'salu':
        if 'm0' in p.defs and c.kind == 'mem' and c.lds_dma: n = max(n, 1)
    elif p.kind == 'mem':
        if p.storedata and c.kind in ('valu', 'mfma') and p.storedata & c.defs: n = max(n, 2)
        if p.storedata and c.kind == 'mem' and p.storedata & c.defs: n = max(n, 1)
    return n

MAXD = 13

class Kernel:
    def __init__(self, name):
        self.name = name; self.ins = []; self.nlab = 0
    def e(self, text):
        for line in text.split('\n'):
            line = line.strip()
            if line: self.ins.append(Ins(line))
    __call__ = e
    def lab(self, base):
        self.nlab += 1; return f"L_{self.name}_{base}_{self.nlab}"
    def _need_before(self, hist, c):
        d = 0; req = 0
        for p in reversed(hist):
            if d >= MAXD: break
            n = need(p, c)
            if n > d: req = max(req, n - d)
            d += p.states
        return req
    def finalize(self):
        out = []
        self.nops = 0
        for c in self.ins:
            if c.kind != 'none':
                r = self._need_before(out[-40:], c)
                if r > 0:
                    out.append(Ins(f"s_nop {r-1}")); self.nops += r
            out.append(c)
        labs = {c.label: i for i, c in enumerate(out) if c.label}
        for j, c in enumerate(out):
            if c.target is not None:
                i = labs[c.target]
                hist = list(out[max(0, j-40):j+1])
                for k in range(i, min(len(out), i+30)):
                    n = out[k]
                    if n.kind != 'none':
                        r = self._need_before(hist, n)
                        assert r == 0, f"hazard across branch {c.text} -> {n.text} needs {r}"
                    hist.append(n)
        self.out = out
        maxv = maxa = maxs = -1
        for c in out:
            for r in c.defs | c.uses:
                if r[0] == 'v' and r != 'vcc': maxv = max(maxv, int(r[1:]))
                elif r[0] == 'a': maxa = max(maxa, int(r[1:]))
                elif r[0] == 's' and r != 'scc': maxs = max(maxs, int(r[1:]))
        self.maxv, self.maxa, self.maxs = maxv, maxa, maxs
        return self
    def text(self):
        s = f".globl {self.name}\n.p2align 8\n.type {self.name},@function\n{self.name}:\n"
        for c in self.out:
            s += (c.text if c.label else "  " + c.text) + "\n"
        return s
    def desc(self):
        acc = max(4, (self.maxv + 1 + 3) // 4 * 4)
        nv = acc + self.maxa + 1 if self.maxa >= 0 else self.maxv + 1
        assert acc <= 256 and nv <= 512 and self.maxs < 102
        return f""".p2align 6
.amdhsa_kernel {self.name}
  .amdhsa_next_free_vgpr {nv}
  .amdhsa_next_free_sgpr {max(self.maxs + 1, 16)}
  .amdhsa_accum_offset {acc}
  .amdhsa_group_segment_fixed_size 0
  .amdhsa_kernarg_size 88
  .amdhsa_user_sgpr_count 2
  .amdhsa_user_sgpr_kernarg_segment_ptr 1
  .amdhsa_system_sgpr_workgroup_id_x 1
.end_amdhsa_kernel
"""

def vr(a, n=1): return f"v{a}" if n == 1 else f"v[{a}:{a+n-1}]"
def sr(a, n=1): return f"s{a}" if n == 1 else f"s[{a}:{a+n-1}]"
import struct
def fhex(x): return "0x%08x" % struct.unpack('<I', struct.pack('<f', x))[0]

def build_file(path, header, launches, kernels):
    s = header
    for (k, grid, block, lds) in launches:
        s += f"; @launch kernel={k} grid=({grid},1,1) block=({block},1,1) lds={lds}\n"
    s += '.amdgcn_target "amdgcn-amd-amdhsa--gfx950"\n.text\n'
    for k in kernels: s += k.text()
    s += '.section .rodata,"a"\n'
    for k in kernels: s += k.desc()
    open(path, 'w').write(s)
```

```python
from asm import *
import math
A_X, A_WR, A_WI, A_W1, A_B1, A_W2, A_B2, A_OUT, A_DBG, A_WS = 0, 8, 16, 32, 40, 48, 56, 64, 72, 80
MB = 1 << 20
WS_Z, SZ_Z = 0, 4*MB
WS_RS, SZ_RS = 4*MB, 16384
WS_WT, SZ_WT = 5*MB, 4*MB
WS_W1, SZ_W1 = 9*MB, 3584*2048
WS_W2, SZ_W2 = 16*MB, 3584*2048
WS_H,  SZ_H  = 24*MB, 2048*3584*2
WS_P,  SZ_P  = 40*MB, 8*MB
R2 = math.sqrt(0.5)

def srd(k, d, base, off, size):
    if off:
        k(f"s_add_u32 s{d}, s{base}, {hex(off)}\ns_addc_u32 s{d+1}, s{base+1}, 0")
    else:
        k(f"s_mov_b32 s{d}, s{base}\ns_mov_b32 s{d+1}, s{base+1}")
    k(f"s_mov_b32 s{d+2}, {hex(size)}\ns_mov_b32 s{d+3}, 0x20000")

def angle(k, dst, fl, mul, base):
    if mul == 0: k(f"v_mov_b32 v{dst}, v{base}")
    else: k(f"v_fmamk_f32 v{dst}, v{fl}, {fhex(float(mul))}, v{base}")

def trig_table(k, fl, base, muls, cdst, sdst, tmp):
    n = len(muls)
    angle(k, tmp, fl, muls[0], base)
    for i in range(n):
        t = tmp + (i & 1)
        if i + 1 < n: angle(k, tmp + ((i+1) & 1), fl, muls[i+1], base)
        k(f"v_cos_f32 v{cdst[i]}, v{t}\nv_sin_f32 v{sdst[i]}, v{t}")

def breg(r):
    return 8*(r >> 2) + (r & 3)

def cmul_pack(k, yr, yi, c, s, out, tmp, mode, rng=range(8), swap=False):
    L = list(rng)
    for idx in range(0, len(L), 2):
        grp = L[idx:idx+2]
        T = {p: tmp + 4*j for j, p in enumerate(grp)}
        for p in grp:
            r = 2*p
            k(f"v_pk_mul_f32 {vr(T[p],2)}, {vr(yr+r,2)}, {vr(c+r,2)}")
            k(f"v_pk_mul_f32 {vr(T[p]+2,2)}, {vr(yi+r,2)}, {vr(c+r,2)}")
        for p in grp:
            r = 2*p
            neg = "neg_lo:[1,0,0] neg_hi:[1,0,0]"
            k(f"v_pk_fma_f32 {vr(T[p],2)}, {vr(yi+r,2)}, {vr(s+r,2)}, {vr(T[p],2)} " + (neg if mode == 'pos' else ''))
            k(f"v_pk_fma_f32 {vr(T[p]+2,2)}, {vr(yr+r,2)}, {vr(s+r,2)}, {vr(T[p]+2,2)} " + (neg if mode == 'conj' else ''))
        for p in grp:
            r = 2*p
            for j in range(2):
                a, b = T[p]+j, T[p]+2+j
                if swap: a, b = b, a
                k(f"v_cvt_pk_bf16_f32 v{out+r+j}, v{a}, v{b}")

def wave_sum(k, regs):
    for m in ("row_shr:1 row_mask:0xf", "row_shr:2 row_mask:0xf", "row_shr:4 row_mask:0xf", "row_shr:8 row_mask:0xf",
              "row_bcast:15 row_mask:0xa", "row_bcast:31 row_mask:0xc"):
        for r in regs:
            k(f"v_add_f32_dpp v{r}, v{r}, v{r} {m} bank_mask:0xf")

M32 = "v_mfma_f32_32x32x16_bf16"
M16 = "v_mfma_f32_16x16x32_bf16"
```

```python
from common import *

def interleave(k, mf, fill, start=0):
    n = len(mf) - start
    done = 0
    for i, m in enumerate(mf):
        k(m)
        if i >= start:
            want = -(-len(fill) * (i - start + 1) // n)
            while done < want:
                k(fill[done]); done += 1
    while done < len(fill):
        k(fill[done]); done += 1

def merge(*lists):
    items = []
    for li, l in enumerate(lists):
        for j, x in enumerate(l):
            items.append(((j + 0.5) / len(l), li, x))
    items.sort(key=lambda t: (t[0], t[1]))
    return [x for _, _, x in items]

G1_STAGE = 28672 + 16*1088
G1_LDS = 3 * G1_STAGE

def gen_g1(name):
    k = Kernel(name)
    ACC = 0
    FA = [112, 156]; FB = [140, 184]
    SS = 200
    RA = 204
    RB = 210
    VA = 213
    VB = 215
    BL = 220
    L, T = 234, 236
    VH, VH6 = 244, 245
    acc = lambda t, st: ACC + 16*t + 4*st
    k(f"""s_cmp_ge_u32 s2, 256
    s_cbranch_scc1 L_g1_end
    s_load_dwordx2 s[4:5], s[0:1], {A_WS}
    s_load_dwordx2 s[6:7], s[0:1], {A_B1}
    v_and_b32 v{L}, 63, v0
    v_lshrrev_b32 v{T}, 6, v0
    s_and_b32 s20, s2, 1
    s_bfe_u32 s21, s2, 0x30003
    v_readfirstlane_b32 s22, v{T}
    s_lshl3_add_u32 s20, s20, s21
    s_bfe_u32 s21, s2, 0x20001
    s_lshr_b32 s23, s2, 6
    s_lshl2_add_u32 s21, s21, s23
    s_and_b32 s23, s22, 1
    s_lshr_b32 s24, s22, 1""")
    k(f"""s_mul_i32 s25, s21, {16*28672}
    s_mul_i32 s26, s22, 7168
    s_add_u32 s25, s25, s26
    v_lshl_add_u32 v{VA}, v{L}, 4, s25
    v_add_u32 v{VA+1}, 4096, v{VA}
    s_lshl_b32 s25, s22, 16
    s_lshl_b32 s27, s20, 10
    s_add_u32 s25, s25, s27
    v_lshl_add_u32 v{VB}, v{L}, 4, s25
    v_add_u32 v{VB+1}, 0x4000, v{VB}
    v_add_u32 v{VB+2}, 0x8000, v{VB}
    v_add_u32 v{VB+3}, 0xc000, v{VB}
    s_mul_i32 s27, s22, {4*1088}
    s_add_u32 s27, s27, 28672
    s_mul_i32 s28, s21, 448
    s_lshl_b32 s29, s23, 8
    s_add_u32 s29, s29, s28
    v_lshrrev_b32 v{T}, 4, v{L}
    v_lshl_add_u32 v{T+1}, v{T}, 3, s29
    s_lshl_b32 s29, s23, 5
    s_add_u32 s29, s29, s28
    v_lshl_add_u32 v{T+2}, v{T}, 3, s29
    s_waitcnt lgkmcnt(0)""")
    srd(k, 8, 4, WS_W1, SZ_W1)
    srd(k, 12, 4, WS_Z, SZ_Z)
    srd(k, 16, 6, 0, 7168)
    for t in range(6):
        k(f"buffer_load_dwordx2 {vr(BL+2*t,2)}, v{T+1}, s[16:19], 0 offen offset:{32*t}")
    k(f"buffer_load_dwordx2 {vr(BL+12,2)}, v{T+2}, s[16:19], 0 offen offset:192")
    def dma(st):
        ring = (st % 3) * G1_STAGE
        o = [f"s_mov_b32 s30, {st*28672}", f"s_mov_b32 s31, {st*262144}"]
        for j in range(4):
            o.append(f"s_add_u32 m0, s27, {ring + j*1088}")
            o.append(None)
            o.append(f"buffer_load_dwordx4 v{VB+j}, s[12:15], s31 offen lds")
        for j in range(7):
            if j % 4 == 0:
                o.append(f"s_add_u32 m0, s26, {ring + (j//4)*4096}")
                o.append(None)
            o.append(f"buffer_load_dwordx4 v{VA+j//4}, s[8:11], s30 offen offset:{(j%4)*1024} lds")
        return o
    def fill_none(lst, others):
        out = []; others = list(others)
        for x in lst:
            if x is None:
                if others: out.append(others.pop(0))
            else: out.append(x)
        return out, others
    for st in range(2):
        for x in dma(st):
            if x: k(x)
    k(f"""v_and_b32 v{T+1}, 15, v{L}
    v_and_b32 v{T+2}, 7, v{L}
    v_xor_b32 v{T+2}, v{T+2}, v{T}
    v_lshlrev_b32 v{T+2}, 4, v{T+2}
    v_lshl_add_u32 v{T+2}, v{T+1}, 7, v{T+2}
    s_mul_i32 s28, s23, {7*2048}
    v_add_u32 v{RA}, s28, v{T+2}
    v_xor_b32 v{RA+1}, 64, v{RA}
    v_mul_u32_u24 v{T+2}, {2*1088}, v{T}
    v_lshl_add_u32 v{T+2}, v{T+1}, 3, v{T+2}
    s_lshl_b32 s28, s24, 9
    s_add_u32 s28, s28, 28672
    v_add_u32 v{RB}, s28, v{T+2}""")
    for r in (1, 2):
        k(f"v_add_u32 v{RA+2*r}, {r*G1_STAGE}, v{RA}\nv_add_u32 v{RA+2*r+1}, {r*G1_STAGE}, v{RA+1}\nv_add_u32 v{RB+r}, {r*G1_STAGE}, v{RB}")
    k(f"""s_mul_i32 s28, s20, 112
    s_mul_i32 s29, s21, 7
    s_add_u32 s28, s28, s29
    s_lshl_b32 s28, s28, 13
    s_lshl_b32 s29, s24, 12
    s_add_u32 s28, s28, s29
    s_lshl_b32 s29, s23, 15
    s_add_u32 s29, s29, s28
    v_lshl_add_u32 v{VH}, v{L}, 4, s29
    s_lshl_b32 s29, s23, 3
    s_add_u32 s29, s29, s28
    s_add_u32 s29, s29, {3*8192}
    v_lshl_add_u32 v{VH6}, v{L}, 4, s29""")
    for r in range(112): k(f"v_mov_b32 v{ACC+r}, 0")
    for r in range(4): k(f"v_mov_b32 v{SS+r}, 0")
    def reads(st, ksub, s):
        ring = st % 3
        o = []
        for j in range(4):
            for hi in range(2):
                o.append(f"ds_read_b64 {vr(FB[s]+4*j+2*hi,2)}, v{RB+ring} offset:{(8*ksub+hi)*1088 + j*128}")
        for t in range(7):
            o.append(f"ds_read_b128 {vr(FA[s]+4*t,4)}, v{RA+2*ring+ksub} offset:{t*2048}")
        return o
    def mfmas(s):
        return [f"{M16} {vr(acc(t,st),4)}, {vr(FA[s]+4*t,4)}, {vr(FB[s]+4*st,4)}, {vr(acc(t,st),4)}" for t in range(7) for st in range(4)]
    def dots(s):
        return [f"v_dot2_f32_bf16 v{SS+st}, v{FB[s]+4*st+q}, v{FB[s]+4*st+q}, v{SS+st}" for q in range(4) for st in range(4)]
    NST = 16
    for i in range(NST + 1):
        if i < NST:
            k(f"s_waitcnt vmcnt({11 if i+1 < NST else 0}) lgkmcnt(0)\ns_barrier")
            rd = reads(i, 0, 0)
            d = dma(i+2) if i+2 < NST else []
            dd = dots(1) if i > 0 else []
            d, dd = fill_none(d, dd)
            fill = rd + merge(d, dd) if (d or dd) and d and dd else rd + d + dd
        else:
            k("s_waitcnt lgkmcnt(0)")
            fill = dots(1)
        if i > 0: interleave(k, mfmas(1), fill)
        else:
            for x in fill: k(x)
        if i < NST:
            k("s_waitcnt lgkmcnt(0)")
            interleave(k, mfmas(0), reads(i, 1, 1) + dots(0))
    BF = FA[0]
    RSV = SS
    for t in range(7):
        for j in range(2):
            k(f"v_lshlrev_b32 v{BF+4*t+2*j}, 16, v{BL+2*t+j}\nv_and_b32 v{BF+4*t+2*j+1}, 0xffff0000, v{BL+2*t+j}")
    for op in ("v_permlane32_swap_b32", "v_permlane16_swap_b32"):
        for st in range(4): k(f"v_mov_b32 v{T+st}, v{SS+st}")
        for st in range(4): k(f"{op} v{SS+st}, v{T+st}")
        for st in range(4): k(f"v_add_f32 v{SS+st}, v{SS+st}, v{T+st}")
    k(f"v_mov_b32 v{T}, {fhex(1e-5)}")
    for st in range(4): k(f"v_fmamk_f32 v{SS+st}, v{SS+st}, {fhex(2/(1024*1024))}, v{T}")
    for st in range(4): k(f"v_rsq_f32 v{SS+st}, v{SS+st}")
    for st in range(4): k(f"v_mul_f32 v{SS+st}, {fhex(2/1024)}, v{SS+st}")
    c2 = -2*math.sqrt(2/math.pi)*math.log2(math.e); c1 = c2*0.044715
    C2 = T
    k(f"s_mov_b32 s36, {fhex(c1)}\ns_mov_b32 s37, {fhex(c1)}\nv_mov_b32 v{C2}, {fhex(c2)}\nv_mov_b32 v{C2+1}, {fhex(c2)}")
    srd(k, 16, 4, WS_H, SZ_H)
    OUT = FA[1]; TMP = FB[0]
    def gelu_group(items):
        n = len(items)
        for j, (a, b, st, o) in enumerate(items):
            sel = "op_sel_hi:[1,0,1]" if st % 2 == 0 else "op_sel:[0,1,0] op_sel_hi:[1,1,1]"
            k(f"v_pk_fma_f32 {vr(a,2)}, {vr(a,2)}, {vr(RSV+(st&2),2)}, {vr(b,2)} {sel}")
        for j, (a, b, st, o) in enumerate(items): k(f"v_pk_mul_f32 {vr(TMP+2*j,2)}, {vr(a,2)}, {vr(a,2)}")
        for j, (a, b, st, o) in enumerate(items): k(f"v_pk_fma_f32 {vr(TMP+2*j,2)}, {vr(TMP+2*j,2)}, s[36:37], {vr(C2,2)}")
        for j, (a, b, st, o) in enumerate(items): k(f"v_pk_mul_f32 {vr(TMP+2*j,2)}, {vr(TMP+2*j,2)}, {vr(a,2)}")
        for j in range(2*n): k(f"v_exp_f32 v{TMP+j}, v{TMP+j}")
        for j in range(n): k(f"v_pk_add_f32 {vr(TMP+2*j,2)}, {vr(TMP+2*j,2)}, 1.0 op_sel_hi:[1,0]")
        for j in range(2*n): k(f"v_rcp_f32 v{TMP+j}, v{TMP+j}")
        for j, (a, b, st, o) in enumerate(items): k(f"v_pk_mul_f32 {vr(TMP+2*j,2)}, {vr(TMP+2*j,2)}, {vr(a,2)}")
        for j, (a, b, st, o) in enumerate(items): k(f"v_cvt_pk_bf16_f32 v{o}, v{TMP+2*j}, v{TMP+2*j+1}")
    cnt = 0
    for pr in range(3):
        k(f"s_mov_b32 s30, {pr*8192}")
        for st in range(4):
            o = OUT + 4*(cnt % 6); cnt += 1
            items = [(acc(2*pr+tt, st)+2*j, BF+4*(2*pr+tt)+2*j, st, o+2*tt+j) for tt in range(2) for j in range(2)]
            gelu_group(items)
            k(f"buffer_store_dwordx4 {vr(o,4)}, v{VH}, s[16:19], s30 offen offset:{st*1024}")
    for st2 in range(2):
        o = OUT + 4*(cnt % 6); cnt += 1
        items = [(acc(6, 2*st2+tt)+2*j, BF+24+2*j, 2*st2+tt, o+2*tt+j) for tt in range(2) for j in range(2)]
        gelu_group(items)
        for tt in range(2):
            k(f"buffer_store_dwordx2 {vr(o+2*tt,2)}, v{VH6}, s[16:19], 0 offen offset:{(2*st2+tt)*1024}")
    k("L_g1_end:\ns_endpgm")
    return k.finalize()

G2_NS = 4
G2_LDS = G2_NS * 32768

def gen_g2(name):
    k = Kernel(name)
    ACC = 0
    FA = [64, 96]; FB = [80, 112]
    RA, RB = 128, 130
    VA, VB, L, T = 132, 133, 134, 136
    BL = 140
    VP = 148
    acc = lambda i, st: ACC + 16*i + 4*st
    k(f"""s_cmp_ge_u32 s2, 256
    s_cbranch_scc1 L_g2_end
    s_load_dwordx2 s[4:5], s[0:1], {A_WS}
    s_load_dwordx2 s[6:7], s[0:1], {A_B2}
    v_and_b32 v{L}, 63, v0
    v_lshrrev_b32 v{T}, 6, v0
    s_and_b32 s20, s2, 3
    s_bfe_u32 s21, s2, 0x20003
    v_readfirstlane_b32 s22, v{T}
    s_lshl2_add_u32 s20, s20, s21
    s_lshr_b32 s21, s2, 5
    s_bfe_u32 s25, s2, 0x10002
    s_and_b32 s23, s22, 1
    s_lshr_b32 s24, s22, 1""")
    k(f"""s_mul_i32 s26, s25, 56
    s_mul_i32 s27, s21, 112
    s_add_u32 s27, s27, s26
    s_lshl_b32 s27, s27, 13
    s_lshl_b32 s28, s22, 12
    s_add_u32 s27, s27, s28
    v_lshl_add_u32 v{VA}, v{L}, 4, s27
    s_mul_i32 s27, s20, 112
    s_add_u32 s27, s27, s26
    s_lshl_b32 s27, s27, 13
    s_add_u32 s27, s27, s28
    v_lshl_add_u32 v{VB}, v{L}, 4, s27
    s_lshl_b32 s26, s21, 8
    s_lshl_b32 s27, s23, 7
    s_add_u32 s26, s26, s27
    v_lshrrev_b32 v{T}, 4, v{L}
    v_lshl_add_u32 v{T+1}, v{T}, 4, s26
    s_waitcnt lgkmcnt(0)""")
    srd(k, 16, 6, 0, 2048)
    k("s_cmp_eq_u32 s25, 0\ns_cselect_b32 s18, s18, 0")
    srd(k, 8, 4, WS_W2, SZ_W2)
    srd(k, 12, 4, WS_H, SZ_H)
    for rr in range(2):
        k(f"buffer_load_dwordx4 {vr(BL+4*rr,4)}, v{T+1}, s[16:19], 0 offen offset:{64*rr}")
    def dma(st):
        ring = (st % G2_NS) * 32768
        o = [f"s_add_u32 m0, s28, {ring}", f"s_mov_b32 s30, {st*16384}"]
        for j in range(4): o.append(f"buffer_load_dwordx4 v{VA}, s[8:11], s30 offen offset:{j*1024} lds")
        o.append(f"s_add_u32 m0, s28, {ring+16384}")
        o.append("s_nop 0")
        for j in range(4): o.append(f"buffer_load_dwordx4 v{VB}, s[12:15], s30 offen offset:{j*1024} lds")
        return o
    for st in range(G2_NS - 1):
        for x in dma(st): k(x)
    k(f"""s_lshl_b32 s26, s23, 12
    v_lshl_add_u32 v{RA}, v{L}, 4, s26
    v_add_u32 v{RA+1}, 0x10000, v{RA}
    s_lshl_b32 s26, s24, 12
    s_add_u32 s26, s26, 16384
    v_lshl_add_u32 v{RB}, v{L}, 4, s26
    v_add_u32 v{RB+1}, 0x10000, v{RB}
    v_and_b32 v{T+2}, 15, v{L}
    s_lshl_b32 s26, s20, 7
    s_lshl_b32 s27, s24, 6
    s_add_u32 s26, s26, s27
    v_add_u32 v{T+2}, s26, v{T+2}
    v_lshl_add_u32 v{VP}, v{T+2}, 11, v{T+1}
    s_lshl_b32 s26, s25, 22
    v_add_u32 v{VP}, s26, v{VP}
    s_waitcnt vmcnt({8*(G2_NS-1)})""")
    for r in range(4):
        for i in range(4):
            e = 4*(r & 1) + i; src = BL + 4*(r >> 1) + (e >> 1)
            if e & 1: k(f"v_and_b32 v{acc(i,0)+r}, 0xffff0000, v{src}")
            else: k(f"v_lshlrev_b32 v{acc(i,0)+r}, 16, v{src}")
    for st in range(1, 4):
        for i in range(4):
            for r in range(0, 4, 2):
                k(f"v_pk_mov_b32 {vr(acc(i,st)+r,2)}, {vr(acc(i,0)+r,2)}, {vr(acc(i,0)+r,2)} op_sel:[0,1]")
    def reads(st, ksub, s):
        ring = st % G2_NS
        off = (ring & 1) * 32768 + ksub * 8192
        o = []
        for j in range(4):
            o.append(f"ds_read_b128 {vr(FA[s]+4*j,4)}, v{RA+(ring>>1)} offset:{off + j*1024}")
            o.append(f"ds_read_b128 {vr(FB[s]+4*j,4)}, v{RB+(ring>>1)} offset:{off + j*1024}")
        return o
    def mfmas(s):
        return [f"{M16} {vr(acc(i,st),4)}, {vr(FA[s]+4*i,4)}, {vr(FB[s]+4*st,4)}, {vr(acc(i,st),4)}" for i in range(4) for st in range(4)]
    NST = 28
    for i in range(NST + 1):
        if i < NST:
            inflight = min(G2_NS - 2, NST - 1 - i)
            k(f"s_waitcnt vmcnt({8*inflight}) lgkmcnt(0)\ns_barrier")
            fill = reads(i, 0, 0) + (dma(i+G2_NS-1) if i+G2_NS-1 < NST else [])
        else:
            k("s_waitcnt lgkmcnt(0)")
            fill = []
        if i > 0: interleave(k, mfmas(1), fill)
        else:
            for x in fill: k(x)
        if i < NST:
            k("s_waitcnt lgkmcnt(0)")
            interleave(k, mfmas(0), reads(i, 1, 1))
    srd(k, 16, 4, WS_P, SZ_P)
    OUT = FA[0]
    for st in range(4):
        k(f"s_mov_b32 s30, {st*32768}")
        for rr in range(2):
            o = OUT + 8*st + 4*rr
            for r2 in range(2):
                for ip in range(2):
                    r = 2*rr + r2
                    k(f"v_cvt_pk_bf16_f32 v{o+2*r2+ip}, v{acc(2*ip,st)+r}, v{acc(2*ip+1,st)+r}")
            k(f"buffer_store_dwordx4 {vr(o,4)}, v{VP}, s[16:19], s30 offen offset:{64*rr}")
    k("L_g2_end:\ns_endpgm")
    return k.finalize()
```

```python
from common import *

class F2R:
    LANE = 1; T0 = 2
    MC = 12; MS = 20; TWC = 28; TWS = 44; M2 = 60
    X = 76
    YR = [108, 140]; YI = [124, 156]
    PK = [172, 188]
    END = 204

def lane_consts(k, R):
    k(f"v_and_b32 v{R.LANE}, 63, v0")

def f2_tables(k, R):
    t = R.T0
    L = R.LANE
    fi, hf, f32, b8, f1k, b4, fe, be, ta = t, t+1, t+2, t+3, t+4, t+5, t+6, t+7, t+8
    k(f"""v_and_b32 v{fi}, 31, v{L}
    v_lshrrev_b32 v{hf}, 5, v{L}
    v_lshrrev_b32 v{fe}, 1, v{fi}
    v_and_b32 v{fe}, 9, v{fe}
    v_lshrrev_b32 v{be}, 2, v{fi}
    v_and_b32 v{be}, 2, v{be}
    v_and_or_b32 v{fe}, v{fi}, 4, v{fe}
    v_or_b32 v{fe}, v{fe}, v{be}
    v_and_b32 v{be}, 1, v{fi}
    v_cvt_f32_u32 v{fi}, v{fi}
    v_cvt_f32_u32 v{hf}, v{hf}
    v_cvt_f32_u32 v{fe}, v{fe}
    v_cvt_f32_u32 v{be}, v{be}
    v_mul_f32 v{f32}, {fhex(1/32)}, v{fi}
    v_mul_f32 v{f1k}, {fhex(1/1024)}, v{fi}
    v_mul_f32 v{fe}, {fhex(1/32)}, v{fe}
    v_mul_f32 v{hf}, 4.0, v{hf}
    v_mul_f32 v{be}, {fhex(0.25)}, v{be}
    v_mul_f32 v{b4}, v{f1k}, v{hf}
    v_mul_f32 v{b8}, v{f32}, v{hf}
    v_fmac_f32 v{be}, v{fe}, v{hf}
    v_add_f32 v{b8}, v{b8}, v{b8}""")
    muls = [16*tt + j for tt in range(2) for j in range(8)]
    trig_table(k, f32, b8, muls, [R.TWC+i for i in range(16)], [R.TWS+i for i in range(16)], ta)
    for i in range(8):
        k(f"v_cvt_pk_bf16_f32 v{R.MC+i}, v{R.TWC+2*i}, v{R.TWC+2*i+1}")
        k(f"v_cvt_pk_bf16_f32 v{R.MS+i}, -v{R.TWS+2*i}, -v{R.TWS+2*i+1}")
    muls = [breg(r) for r in range(16)]
    trig_table(k, fe, be, muls, [R.TWC+i for i in range(16)], [R.TWS+i for i in range(16)], ta)
    for i in range(16):
        k(f"v_cvt_pk_bf16_f32 v{R.M2+i}, v{R.TWC+i}, v{R.TWS+i}")
    trig_table(k, f1k, b4, muls, [R.TWC+i for i in range(16)], [R.TWS+i for i in range(16)], ta)

def f2_core(k, R, xs, snyq):
    for row in range(2):
        for n, (reg, t) in enumerate(xs[row]):
            for (acc, M) in ((R.YR[row], R.MC), (R.YI[row], R.MS)):
                c = "0" if n == 0 else vr(acc, 16)
                k(f"{M32} {vr(acc,16)}, {vr(reg,4)}, {vr(M+4*t,4)}, {c}")
    for row in range(2):
        yr, yi = R.YR[row], R.YI[row]
        t = R.T0 + 8
        k(f"v_pk_add_f32 {vr(t,2)}, {vr(yr,2)}, {vr(yr+2,2)}")
        for p in range(2, 8):
            k(f"v_pk_add_f32 {vr(t,2)}, {vr(t,2)}, {vr(yr+2*p,2)}")
        k(f"v_sub_f32 v{t}, v{t}, v{t+1}")
        cmul_pack(k, yr, yi, R.TWC, R.TWS, R.PK[row], R.T0, 'conj', range(0, 2))
        k(f"v_readlane_b32 s{snyq+2*row}, v{t}, 0\nv_readlane_b32 s{snyq+2*row+1}, v{t}, 32")
        cmul_pack(k, yr, yi, R.TWC, R.TWS, R.PK[row], R.T0, 'conj', range(2, 8))
        for g in range(4):
            c = "0" if g == 0 else vr(yr, 16)
            k(f"{M32} {vr(yr,16)}, {vr(R.M2+4*g,4)}, {vr(R.PK[row]+4*g,4)}, {c}")

def slot0_fix(k, R, row, snyq, smask, sdc):
    yr = R.YR[row]; t = R.T0
    k(f"v_mov_b32 v{t}, s{snyq+2*row}")
    k(f"v_add_f32 v{t}, s{snyq+2*row+1}, v{t}")
    k(f"v_mul_f32 v{t}, {fhex(R2)}, v{t}")
    if sdc is not None: k(f"v_readlane_b32 s{sdc}, v{yr}, 0")
    k(f"v_cndmask_b32 v{yr}, v{yr}, v{t}, s[{smask}:{smask+1}]")
    k(f"v_cndmask_b32 v{yr+1}, v{yr+1}, 0, s[{smask}:{smask+1}]")

def role_rowfwd(k, mode, sid):
    R = F2R
    ninp = 1 if mode == 'x' else 2
    k(f"""s_load_dwordx2 s[4:5], s[0:1], {A_WS}
    s_load_dwordx2 s[6:7], s[0:1], {A_X}""")
    lane_consts(k, R)
    k(f"""v_lshrrev_b32 v2, 6, v0
    s_and_b32 s20, s{sid}, 7
    s_lshr_b32 s21, s{sid}, 3
    v_readfirstlane_b32 s22, v2
    s_lshl_b32 s20, s20, 5
    s_add_u32 s20, s20, s21
    s_lshl_b32 s20, s20, 3
    s_lshl1_add_u32 s20, s22, s20
    s_lshl_b32 s23, s20, 11
    v_lshl_add_u32 v2, v{R.LANE}, 4, s23
    s_mul_i32 s24, s22, {4096*ninp}
    s_mov_b32 m0, s24
    s_waitcnt lgkmcnt(0)""")
    if mode == 'x': srd(k, 8, 6, 0, 4*MB)
    else: srd(k, 8, 4, WS_P, SZ_P)
    for i in range(4):
        k(f"buffer_load_dwordx4 v2, s[8:11], 0 offen offset:{1024*i} lds")
    if mode == 'p':
        k(f"s_add_u32 m0, s24, 4096\ns_mov_b32 s25, {4*MB}")
        for i in range(4):
            k(f"buffer_load_dwordx4 v2, s[8:11], s25 offen offset:{1024*i} lds")
    srd(k, 12, 4, WS_Z, SZ_Z)
    srd(k, 16, 4, WS_RS, SZ_RS)
    ZO = 204; Z1 = 208; DC = 224; RO = 226; TA = 227
    k(f"s_lshl_b32 s23, s20, 3\nv_lshlrev_b32 v{ZO}, 15, v{R.LANE}\nv_add_u32 v{ZO}, s23, v{ZO}")
    k(f"s_lshl_b32 s23, s20, 2\nv_mov_b32 v{RO}, s23")
    for G in range(2):
        for half in range(2):
            k(f"s_mov_b32 s{26+2*G+half}, {(128*G+half)*16384}")
    if mode == 'p':
        for G in range(2):
            for half in range(2):
                k(f"buffer_load_dwordx4 {vr(Z1+8*G+4*half,4)}, v{ZO}, s[12:15], s{26+2*G+half} offen")
        k(f"s_movk_i32 s30, 0x2000\nbuffer_load_dwordx2 {vr(DC,2)}, v{RO}, s[16:19], s30 offen")
    L = R.LANE
    k(f"""v_lshrrev_b32 v2, 5, v{L}
    v_lshlrev_b32 v{TA}, 9, v2
    v_bfe_u32 v2, v{L}, 2, 2
    v_lshl_add_u32 v{TA}, v2, 6, v{TA}
    v_bfe_u32 v2, v{L}, 4, 1
    v_lshl_add_u32 v{TA}, v2, 5, v{TA}
    v_and_b32 v2, 3, v{L}
    v_lshl_add_u32 v{TA}, v2, 3, v{TA}
    v_add_u32 v{TA}, s24, v{TA}
    s_mov_b64 s[32:33], 1""")
    f2_tables(k, R)
    k(f"s_waitcnt vmcnt({5 if mode == 'p' else 0})")
    xs = [[], []]
    for row in range(2):
        for inp in range(ninp):
            for t in range(2):
                reg = R.X + inp*16 + row*8 + t*4
                for jj in range(2):
                    k(f"ds_read_b64_tr_b16 {vr(reg+2*jj,2)}, v{TA} offset:{inp*4096 + row*2048 + 1024*t + 256*jj}")
                xs[row].append((reg, t))
    k("s_waitcnt lgkmcnt(0)")
    f2_core(k, R, xs, 34)
    SS = [R.T0+8, R.T0+9]
    if mode == 'p': k("s_waitcnt vmcnt(0)")
    OUT = R.PK[0]
    for row in range(2):
        yr = R.YR[row]
        slot0_fix(k, R, row, 34, 32, 38+row)
        if mode == 'p':
            U = R.YI[row]
            for d in range(8):
                z = Z1 + 8*(d >> 2) + 4*((d >> 1) & 1) + 2*row + (d & 1)
                k(f"v_lshlrev_b32 v{U+2*d}, 16, v{z}\nv_and_b32 v{U+2*d+1}, 0xffff0000, v{z}")
            for d in range(8):
                k(f"v_pk_add_f32 {vr(yr+2*d,2)}, {vr(yr+2*d,2)}, {vr(U+2*d,2)}")
        for d in range(8):
            o = OUT + 8*(d >> 2) + 4*((d >> 1) & 1) + 2*row + (d & 1)
            k(f"v_cvt_pk_bf16_f32 v{o}, v{yr+2*d}, v{yr+2*d+1}")
    for G in range(2):
        for half in range(2):
            k(f"buffer_store_dwordx4 {vr(OUT+8*G+4*half,4)}, v{ZO}, s[12:15], s{26+2*G+half} offen")
    for row in range(2):
        k(f"v_mov_b32 v{SS[row]}, 0")
    for d in range(8):
        for row in range(2):
            o = OUT + 8*(d >> 2) + 4*((d >> 1) & 1) + 2*row + (d & 1)
            k(f"v_dot2_f32_bf16 v{SS[row]}, v{o}, v{o}, v{SS[row]}")
    k("s_nop 2")
    wave_sum(k, SS)
    t = R.T0
    k(f"""v_mov_b32 v{t+2}, {fhex(1e-5)}
    v_fmamk_f32 v{t}, v{SS[0]}, {fhex(2/(1024*1024))}, v{t+2}
    v_fmamk_f32 v{t+1}, v{SS[1]}, {fhex(2/(1024*1024))}, v{t+2}
    v_rsq_f32 v{t}, v{t}
    v_rsq_f32 v{t+1}, v{t+1}""")
    if mode == 'p':
        k(f"v_add_f32 v{DC}, s38, v{DC}\nv_add_f32 v{DC+1}, s39, v{DC+1}")
    else:
        k(f"v_mov_b32 v{DC}, s38\nv_mov_b32 v{DC+1}, s39")
    k(f"""s_mov_b32 exec_lo, 0
    s_mov_b32 exec_hi, 0x80000000
    s_movk_i32 s30, 0x2000
    buffer_store_dwordx2 {vr(t,2)}, v{RO}, s[16:19], 0 offen
    buffer_store_dwordx2 {vr(DC,2)}, v{RO}, s[16:19], s30 offen
    s_endpgm""")

def role_w1fft(k, sid):
    R = F2R
    L = R.LANE
    LD = 204
    k(f"""s_load_dwordx2 s[4:5], s[0:1], {A_WS}
    s_load_dwordx2 s[6:7], s[0:1], {A_W1}""")
    lane_consts(k, R)
    k(f"""v_lshrrev_b32 v2, 6, v0
    s_and_b32 s20, s{sid}, 7
    s_lshr_b32 s21, s{sid}, 3
    v_readfirstlane_b32 s22, v2
    s_mul_i32 s20, s20, 28
    s_add_u32 s20, s20, s21
    s_mul_i32 s21, s20, 0x124a
    s_lshr_b32 s21, s21, 16
    s_mul_i32 s23, s21, 14
    s_sub_u32 s23, s20, s23
    s_sub_u32 s24, s23, 1
    s_cmp_eq_u32 s23, 7
    s_cselect_b32 s24, 13, s24
    s_cmp_le_u32 s23, 6
    s_cselect_b32 s23, s23, s24
    s_lshl_b32 s23, s23, 2
    s_add_u32 s23, s23, s22
    s_lshl_b32 s23, s23, 2
    s_lshl_b32 s20, s20, 2
    s_add_u32 s20, s20, s22
    s_lshl_b32 s20, s20, 3
    v_lshrrev_b32 v2, 5, v{L}
    v_and_b32 v3, 31, v{L}
    v_lshl_add_u32 v2, v2, 8, v3
    v_mul_u32_u24 v2, 7168, v2
    v_add_u32 v2, s20, v2
    s_waitcnt lgkmcnt(0)""")
    srd(k, 8, 6, 0, 3584*2048)
    for t in range(2):
        for j in range(8):
            k(f"s_mov_b32 s24, {(16*t+j)*32*7168}\nbuffer_load_dwordx2 {vr(LD+(8*t+j)*2,2)}, v2, s[8:11], s24 offen")
    srd(k, 12, 4, WS_W1, SZ_W1)
    VO = 236; VL7 = 237; VH = 238
    k(f"""v_lshrrev_b32 v{VH}, 3, v{L}
    v_mul_u32_u24 v{VH}, 28672, v{VH}
    v_and_b32 v{VL7}, 7, v{L}
    s_mul_i32 s25, s21, {16*28672}
    s_lshl_b32 s26, s23, 7
    s_add_u32 s25, s25, s26
    s_and_b32 s27, s23, 7
    s_mov_b32 s28, 0x05040100
    s_mov_b32 s29, 0x07060302
    s_mov_b64 s[32:33], 1""")
    f2_tables(k, R)
    k("s_waitcnt vmcnt(0)")
    for pair in range(2):
        xs = [[], []]
        for row in range(2):
            for t in range(2):
                reg = R.X + row*8 + t*4
                for q in range(4):
                    lo = LD + (8*t+2*q)*2 + pair; hi = LD + (8*t+2*q+1)*2 + pair
                    k(f"v_perm_b32 v{reg+q}, v{hi}, v{lo}, s{28+row}")
                xs[row].append((reg, t))
        f2_core(k, R, xs, 34)
        for row in range(2):
            u = 2*pair + row
            yr = R.YR[row]; OUT = R.YI[row]
            slot0_fix(k, R, row, 34, 32, None)
            for d in range(8):
                k(f"v_cvt_pk_bf16_f32 v{OUT+d}, v{yr+2*d}, v{yr+2*d+1}")
            k(f"""s_add_u32 s30, s27, {u}
            v_xor_b32 v{VO}, s30, v{VL7}
            v_lshl_add_u32 v{VO}, v{VO}, 4, v{VH}
            s_add_u32 s30, s25, {u*128}
            s_add_u32 s31, s25, {u*128 + 8*28672}
            buffer_store_dwordx4 {vr(OUT,4)}, v{VO}, s[12:15], s30 offen
            buffer_store_dwordx4 {vr(OUT+4,4)}, v{VO}, s[12:15], s31 offen""")
    k("s_endpgm")

def role_wprep(k, sid):
    k(f"""s_load_dwordx2 s[4:5], s[0:1], {A_WS}
    s_load_dwordx4 s[20:23], s[0:1], {A_WR}
    s_and_b32 s24, s{sid}, 3
    s_bfe_u32 s25, s{sid}, 0x20002
    s_bfe_u32 s26, s{sid}, 0x30004
    s_lshr_b32 s27, s{sid}, 7
    v_and_b32 v1, 127, v0
    v_lshrrev_b32 v2, 7, v0""")
    k(f"""s_lshl_b32 s28, s24, 7
    v_add_u32 v3, s28, v1
    v_mov_b32 v4, 0x200
    v_cmp_eq_u32 vcc, 0, v3
    s_lshl_b32 s28, s26, 8
    s_lshl_b32 s29, s25, 4
    s_add_u32 s28, s28, s29
    s_add_u32 s28, s28, s27
    v_cndmask_b32 v4, v3, v4, vcc
    v_lshl_add_u32 v5, v2, 3, s28
    v_mul_u32_u24 v5, 1026, v5
    v_lshl_add_u32 v5, v4, 1, v5
    s_waitcnt lgkmcnt(0)""")
    srd(k, 8, 20, 0, 2048*513*2)
    srd(k, 12, 22, 0, 2048*513*2)
    for cc in range(4):
        for q in range(4):
            off = (2*cc + 64*q) * 1026
            r = 8 + 4*cc + q
            k(f"s_mov_b32 s30, {off}")
            k(f"buffer_load_ushort v{r}, v5, s[8:11], s30 offen")
            k(f"buffer_load_ushort v{r+16}, v5, s[12:15], s30 offen")
    srd(k, 16, 4, WS_WT, SZ_WT)
    k(f"""v_and_b32 v3, 31, v1
    v_lshlrev_b32 v3, 15, v3
    v_lshrrev_b32 v4, 5, v1
    v_lshl_add_u32 v3, v4, 13, v3
    v_lshl_add_u32 v3, v2, 6, v3
    s_lshl_b32 s28, s24, 20
    s_lshl_b32 s29, s27, 12
    s_add_u32 s28, s28, s29
    s_lshl_b32 s29, s26, 9
    s_add_u32 s28, s28, s29
    s_lshl_b32 s29, s25, 7
    s_add_u32 s28, s28, s29""")
    for cc in range(4):
        k(f"s_waitcnt vmcnt({8*(3-cc) + cc})")
        for q in range(4):
            r = 8 + 4*cc + q
            k(f"v_lshl_or_b32 v{r}, v{r+16}, 16, v{r}")
        k(f"buffer_store_dwordx4 {vr(8+4*cc,4)}, v3, s[16:19], s28 offen offset:{16*cc}")
    k("s_endpgm")

def role_w2tile(k, sid):
    k(f"""s_load_dwordx2 s[4:5], s[0:1], {A_WS}
    s_load_dwordx2 s[6:7], s[0:1], {A_W2}
    v_lshrrev_b32 v2, 6, v0
    v_and_b32 v1, 63, v0
    s_lshr_b32 s20, s{sid}, 1
    v_readfirstlane_b32 s22, v2
    s_and_b32 s21, s{sid}, 1
    s_lshl_b32 s21, s21, 2
    s_add_u32 s21, s21, s22""")
    k(f"""v_bfe_u32 v2, v1, 1, 1
    v_lshlrev_b32 v2, 3, v2
    v_bfe_u32 v3, v1, 2, 2
    v_lshl_add_u32 v2, v3, 1, v2
    v_and_b32 v3, 1, v1
    v_add_u32 v2, v2, v3
    v_lshlrev_b32 v2, 3, v2
    v_lshrrev_b32 v3, 4, v1
    v_lshl_add_u32 v2, v3, 13, v2
    s_lshl_b32 s23, s20, 16
    s_lshl_b32 s24, s21, 8
    s_add_u32 s23, s23, s24
    v_add_u32 v2, s23, v2
    s_waitcnt lgkmcnt(0)""")
    srd(k, 8, 6, 0, 3584*2048)
    for u in range(2):
        for j in range(8):
            off = (16*(j >> 2) + (j & 3)) * 2048
            k(f"s_mov_b32 s25, {off}\nbuffer_load_dwordx2 {vr(8+16*u+2*j,2)}, v2, s[8:11], s25 offen offset:{128*u}")
    srd(k, 12, 4, WS_W2, SZ_W2)
    k(f"""s_mul_i32 s23, s21, 112
    s_add_u32 s23, s23, s20
    s_lshl_b32 s23, s23, 13
    s_add_u32 s24, s23, 4096
    v_lshlrev_b32 v3, 4, v1
    s_mov_b32 s28, 0x05040100
    s_mov_b32 s29, 0x07060302""")
    for u in range(2):
        k(f"s_waitcnt vmcnt({8 if u == 0 else 4})")
        for i in range(4):
            o = 40 + 16*u + 4*i
            for q in range(4):
                lo = 8+16*u+2*(2*q) + (i >> 1); hi = 8+16*u+2*(2*q+1) + (i >> 1)
                k(f"v_perm_b32 v{o+q}, v{hi}, v{lo}, s{28+(i&1)}")
            k(f"buffer_store_dwordx4 {vr(o,4)}, v3, s[12:15], s{23+u} offen offset:{1024*i}")
    k("s_endpgm")

def role_rowinv(k, sid):
    L = 1; T0 = 2
    MR, MI, TWC, TWS, M2 = 12, 20, 28, 44, 60
    ZL = 76
    VR = [92, 124]; VI = [108, 140]
    PK = [156, 172]
    PP = 188
    ZO, RO, XO, DC, KL = 220, 221, 222, 224, 226
    k(f"""s_load_dwordx2 s[4:5], s[0:1], {A_WS}
    s_load_dwordx2 s[6:7], s[0:1], {A_OUT}
    v_and_b32 v{L}, 63, v0
    v_lshrrev_b32 v2, 6, v0
    s_and_b32 s20, s{sid}, 7
    s_lshr_b32 s21, s{sid}, 3
    v_readfirstlane_b32 s22, v2
    s_lshl_b32 s20, s20, 5
    s_add_u32 s20, s20, s21
    s_lshl_b32 s20, s20, 3
    s_lshl1_add_u32 s20, s22, s20
    s_lshl_b32 s23, s20, 3
    v_lshlrev_b32 v{ZO}, 15, v{L}
    v_add_u32 v{ZO}, s23, v{ZO}
    s_waitcnt lgkmcnt(0)""")
    srd(k, 12, 4, WS_Z, SZ_Z)
    for G in range(2):
        for half in range(2):
            k(f"s_mov_b32 s26, {(128*G+half)*16384}")
            for row in range(2):
                k(f"buffer_load_dwordx2 {vr(ZL+8*row+4*G+2*half,2)}, v{ZO}, s[12:15], s26 offen offset:{8*row}")
    srd(k, 8, 4, WS_P, SZ_P)
    srd(k, 16, 4, WS_RS, SZ_RS)
    k(f"""s_lshl_b32 s23, s20, 11
    v_and_b32 v2, 31, v{L}
    v_lshl_add_u32 v{XO}, v2, 6, s23
    v_lshrrev_b32 v2, 5, v{L}
    v_lshl_add_u32 v{XO}, v2, 5, v{XO}
    s_lshl_b32 s23, s20, 2
    v_mov_b32 v{RO}, s23
    s_mov_b32 s25, {4*MB}
    s_movk_i32 s30, 0x2000""")
    for sp in range(2):
        for row in range(2):
            for j in range(2):
                k(f"buffer_load_dwordx4 {vr(PP+16*sp+8*row+4*j,4)}, v{XO}, s[8:11], {'s25' if sp else '0'} offen offset:{2048*row+16*j}")
    k(f"buffer_load_dwordx2 {vr(DC,2)}, v{RO}, s[16:19], s30 offen")
    srd(k, 40, 6, 0, 4*MB)
    fi, hf, f32, b32, fp, p32, pb32, p1k, ta = T0, T0+1, T0+2, T0+3, T0+4, T0+5, T0+6, T0+7, T0+8
    k(f"""v_and_b32 v{fi}, 31, v{L}
    v_lshrrev_b32 v{hf}, 5, v{L}
    v_bfe_u32 v{fp}, v{L}, 2, 1
    v_lshlrev_b32 v{fp}, 4, v{fp}
    v_bfe_u32 v{b32}, v{L}, 3, 2
    v_lshl_add_u32 v{fp}, v{b32}, 2, v{fp}
    v_and_or_b32 v{fp}, v{L}, 3, v{fp}
    v_and_b32 v{b32}, 1, v{L}
    v_cvt_f32_u32 v{KL}, v{b32}
    v_cvt_f32_u32 v{fi}, v{fi}
    v_cvt_f32_u32 v{hf}, v{hf}
    v_cvt_f32_u32 v{fp}, v{fp}
    v_fmaak_f32 v{KL}, {fhex(-2*R2)}, v{KL}, {fhex(-2*R2)}""" if False else
    f"""v_and_b32 v{fi}, 31, v{L}
    v_lshrrev_b32 v{hf}, 5, v{L}
    v_bfe_u32 v{fp}, v{L}, 2, 1
    v_lshlrev_b32 v{fp}, 4, v{fp}
    v_bfe_u32 v{b32}, v{L}, 3, 2
    v_lshl_add_u32 v{fp}, v{b32}, 2, v{fp}
    v_and_or_b32 v{fp}, v{L}, 3, v{fp}
    v_and_b32 v{b32}, 1, v{L}
    v_cvt_f32_u32 v{KL}, v{b32}
    v_cvt_f32_u32 v{fi}, v{fi}
    v_cvt_f32_u32 v{hf}, v{hf}
    v_cvt_f32_u32 v{fp}, v{fp}
    v_mul_f32 v{KL}, {fhex(-2*R2)}, v{KL}
    v_add_f32 v{KL}, {fhex(R2-1)}, v{KL}
    v_sub_f32 v{b32}, 1.0, v{hf}
    v_mul_f32 v{KL}, v{KL}, v{b32}
    v_mul_f32 v{hf}, 4.0, v{hf}
    v_mul_f32 v{f32}, {fhex(1/32)}, v{fi}
    v_mul_f32 v{p32}, {fhex(1/32)}, v{fp}
    v_mul_f32 v{p1k}, {fhex(1/1024)}, v{fp}
    v_mul_f32 v{b32}, v{f32}, v{hf}
    v_mul_f32 v{pb32}, v{p32}, v{hf}
    v_mul_f32 v{fp}, v{p1k}, v{hf}""")
    muls16 = [breg(r) for r in range(16)]
    trig_table(k, p32, pb32, muls16[:8], [TWC+i for i in range(8)], [TWS+i for i in range(8)], ta)
    for i in range(8):
        k(f"v_cvt_pk_bf16_f32 v{MR+i}, v{TWC+i}, -v{TWS+i}")
        k(f"v_cvt_pk_bf16_f32 v{MI+i}, v{TWS+i}, v{TWC+i}")
    trig_table(k, f32, b32, muls16, [TWC+i for i in range(16)], [TWS+i for i in range(16)], ta)
    for i in range(16):
        k(f"v_cvt_pk_bf16_f32 v{M2+i}, v{TWC+i}, -v{TWS+i}")
    trig_table(k, p1k, fp, muls16, [TWC+i for i in range(16)], [TWS+i for i in range(16)], ta)
    k("s_waitcnt vmcnt(9)")
    for row in range(2):
        for G in range(2):
            for (acc, M) in ((VR[row], MR), (VI[row], MI)):
                c = "0" if G == 0 else vr(acc, 16)
                k(f"{M32} {vr(acc,16)}, {vr(ZL+8*row+4*G,4)}, {vr(M+4*G,4)}, {c}")
        k(f"v_readlane_b32 s{34+row}, v{ZL+8*row}, 0")
    k("s_lshl_b32 s34, s34, 16\ns_lshl_b32 s35, s35, 16")
    for row in range(2):
        k(f"v_fmac_f32 v{VR[row]}, s{34+row}, v{KL}")
        cmul_pack(k, VR[row], VI[row], TWC, TWS, PK[row], T0, 'pos')
        for g in range(4):
            c = "0" if g == 0 else vr(VR[row], 16)
            k(f"{M32} {vr(VR[row],16)}, {vr(PK[row]+4*g,4)}, {vr(M2+4*g,4)}, {c}")
    k("s_waitcnt vmcnt(0)")
    k(f"v_mul_f32 v{DC}, {fhex(1/1024)}, v{DC}\nv_mul_f32 v{DC+1}, {fhex(1/1024)}, v{DC+1}")
    k(f"s_mov_b32 s36, {fhex(2/1024)}\ns_mov_b32 s37, {fhex(2/1024)}")
    for row in range(2):
        U = VI[row]; U2 = TWC
        for d in range(8):
            a = PP + 8*row + d; b = PP + 16 + 8*row + d
            k(f"v_lshlrev_b32 v{U+2*d}, 16, v{a}\nv_and_b32 v{U+2*d+1}, 0xffff0000, v{a}")
            k(f"v_lshlrev_b32 v{U2+2*d}, 16, v{b}\nv_and_b32 v{U2+2*d+1}, 0xffff0000, v{b}")
        for d in range(8):
            k(f"v_pk_add_f32 {vr(U+2*d,2)}, {vr(U+2*d,2)}, {vr(U2+2*d,2)}")
        sel = "op_sel:[0,0] op_sel_hi:[1,0]" if row == 0 else "op_sel:[0,1] op_sel_hi:[1,1]"
        for d in range(8):
            k(f"v_pk_add_f32 {vr(U+2*d,2)}, {vr(U+2*d,2)}, {vr(DC,2)} {sel}")
        for d in range(8):
            k(f"v_pk_fma_f32 {vr(U+2*d,2)}, {vr(VR[row]+2*d,2)}, s[36:37], {vr(U+2*d,2)}")
        for d in range(8):
            k(f"v_cvt_pk_bf16_f32 v{PK[row]+d}, v{U+2*d}, v{U+2*d+1}")
        for j in range(2):
            k(f"buffer_store_dwordx4 {vr(PK[row]+4*j,4)}, v{XO}, s[40:43], 0 offen offset:{2048*row+16*j}")
    k("s_endpgm")

def role_col(k, sid):
    L = 1; T0 = 2
    MA, MBm, TWC, TWS = 12, 28, 44, 60
    WR, WI = 76, 92
    WL = 108
    DR, DI = 124, 140
    ZL = 156
    ZF = 172
    RS = 204
    OC, OS = 212, 216
    ZO, RO, WO, LW, LR = 220, 221, 222, 223, 224
    PK = 228
    k(f"""s_load_dwordx2 s[4:5], s[0:1], {A_WS}
    v_and_b32 v{L}, 63, v0
    v_lshrrev_b32 v2, 6, v0
    v_and_b32 v3, 31, v0
    v_lshrrev_b32 v4, 5, v0
    v_lshl_add_u32 v5, v4, 7, v3
    v_readfirstlane_b32 s22, v2
    s_lshl_b32 s23, s{sid}, 14
    v_lshl_add_u32 v{ZO}, v5, 3, s23
    v_lshlrev_b32 v{RO}, 2, v5
    s_lshl_b32 s24, s22, 12
    s_add_u32 s25, s23, s24
    v_lshl_add_u32 v{WO}, v{L}, 4, s25
    s_movk_i32 s26, 0x2000
    s_movk_i32 s27, 0x1000
    s_waitcnt lgkmcnt(0)""")
    srd(k, 12, 4, WS_Z, SZ_Z)
    srd(k, 16, 4, WS_RS, SZ_RS)
    for ab in range(2):
        for q in range(4):
            k(f"buffer_load_dwordx2 {vr(ZL+8*ab+2*q,2)}, v{ZO}, s[12:15], {'s26' if ab else '0'} offen offset:{256*q}")
    for ab in range(2):
        for q in range(4):
            k(f"buffer_load_dword v{RS+4*ab+q}, v{RO}, s[16:19], {'s27' if ab else '0'} offen offset:{128*q}")
    srd(k, 8, 4, WS_WT, SZ_WT)
    for g in range(4):
        k(f"buffer_load_dwordx4 {vr(WL+4*g,4)}, v{WO}, s[8:11], 0 offen offset:{1024*g}")
    k(f"""v_lshlrev_b32 v{LW}, 4, v0
    v_lshl_add_u32 v{LR}, v{L}, 4, s24""")
    fi, hf, f32, b32, f1k, b1k, fs, one, ta = T0+0, T0+1, T0+2, T0+3, T0+4, T0+5, T0+6, T0+7, T0+8
    k(f"""v_cvt_f32_u32 v{fs}, v5
    v_cvt_f32_u32 v{fi}, v3
    v_lshrrev_b32 v{hf}, 5, v{L}
    v_cvt_f32_u32 v{hf}, v{hf}
    v_mul_f32 v{fs}, {fhex(1/2048)}, v{fs}
    v_mov_b32 v{one}, {fhex(1/64)}
    v_mul_f32 v{hf}, 4.0, v{hf}
    v_mul_f32 v{f32}, {fhex(1/32)}, v{fi}
    v_mul_f32 v{f1k}, {fhex(1/1024)}, v{fi}
    v_mul_f32 v{b32}, v{f32}, v{hf}
    v_mul_f32 v{b1k}, v{f1k}, v{hf}""")
    trig_table(k, one, fs, [0, 1, 2, 3], [OC+i for i in range(4)], [OS+i for i in range(4)], ta)
    muls16 = [breg(r) for r in range(16)]
    trig_table(k, f32, b32, muls16, [TWC+i for i in range(16)], [TWS+i for i in range(16)], ta)
    for i in range(16):
        k(f"v_cvt_pk_bf16_f32 v{MA+i}, v{TWC+i}, v{TWS+i}")
        k(f"v_cvt_pk_bf16_f32 v{MBm+i}, -v{TWS+i}, v{TWC+i}")
    trig_table(k, f1k, b1k, muls16, [TWC+i for i in range(16)], [TWS+i for i in range(16)], ta)
    k("s_waitcnt vmcnt(4)")
    zf = lambda ab, i, part: ZF + 16*ab + 8*i + 4*part
    for ab in range(2):
        for q in range(4):
            for i in range(2):
                z = ZL + 8*ab + 2*q + i
                k(f"v_lshlrev_b32 v{zf(ab,i,0)+q}, 16, v{z}\nv_and_b32 v{zf(ab,i,1)+q}, 0xffff0000, v{z}")
    EV, OD = DR, DI
    neg = "neg_lo:[1,0,0] neg_hi:[1,0,0]"
    for i in range(2):
        for part in range(2):
            for qq in range(0, 4, 2):
                o = 8*i + 4*part + qq
                k(f"v_pk_mul_f32 {vr(OD+o,2)}, {vr(zf(0,i,part)+qq,2)}, {vr(RS+qq,2)}")
        for part in range(2):
            for qq in range(0, 4, 2):
                o = 8*i + 4*part + qq
                k(f"v_pk_fma_f32 {vr(EV+o,2)}, {vr(zf(1,i,part)+qq,2)}, {vr(RS+4+qq,2)}, {vr(OD+o,2)}")
                k(f"v_pk_fma_f32 {vr(OD+o,2)}, {vr(zf(1,i,part)+qq,2)}, {vr(RS+4+qq,2)}, {vr(OD+o,2)} {neg}")
        for q in range(4):
            k(f"v_cvt_pk_bf16_f32 v{PK+8*i+q}, v{EV+8*i+q}, v{EV+8*i+4+q}")
        k(f"ds_write_b128 v{LW}, {vr(PK+8*i,4)} offset:{(2*i)*4096}")
        cmul_pack(k, OD+8*i, OD+8*i+4, OC, OS, PK+8*i+4, T0, 'conj', range(2))
        k(f"ds_write_b128 v{LW}, {vr(PK+8*i+4,4)} offset:{(2*i+1)*4096}")
    k("s_waitcnt vmcnt(0)")
    for r in range(16):
        k(f"v_lshlrev_b32 v{WR+r}, 16, v{WL+r}\nv_and_b32 v{WI+r}, 0xffff0000, v{WL+r}")
    k("s_waitcnt lgkmcnt(0)\ns_barrier")
    U = WL
    for g in range(4):
        k(f"ds_read_b128 {vr(U+4*g,4)}, v{LR} offset:{1024*g}")
    def stage(data, data_is_A, swap, waits=False):
        for g in range(4):
            if waits: k(f"s_waitcnt lgkmcnt({3-g})")
            for (acc, M) in (((DR, MA), (DI, MBm)) if not swap else ((DI, MA), (DR, MBm))):
                c = "0" if g == 0 else vr(acc, 16)
                a, b = (vr(data+4*g,4), vr(M+4*g,4)) if data_is_A else (vr(M+4*g,4), vr(data+4*g,4))
                k(f"{M32} {vr(acc,16)}, {a}, {b}, {c}")
    stage(U, True, False, True)
    cmul_pack(k, DR, DI, TWC, TWS, PK, T0, 'conj')
    stage(PK, False, False)
    cmul_pack(k, DR, DI, WR, WI, U, T0, 'pos', swap=True)
    stage(U, True, True)
    cmul_pack(k, DR, DI, TWC, TWS, PK, T0, 'pos', swap=True)
    stage(PK, False, True)
    k(f"v_add_u32 v{LR}, s24, v{LR}")
    for part, acc in enumerate((DR, DI)):
        for g in range(4):
            k(f"ds_write_b128 v{LR}, {vr(acc+4*g,4)} offset:{16384 + part*4096 + g*1024}")
    k(f"""s_mov_b32 s36, {fhex(1/2048)}
    s_mov_b32 s37, {fhex(1/2048)}
    s_cmp_eq_u32 s{sid}, 0
    s_cselect_b32 s38, 0, s36
    s_mov_b32 s39, s38
    s_waitcnt lgkmcnt(0)
    s_barrier""")
    O = WR
    for w in (1, 3, 0, 2):
        for part in range(2):
            k(f"ds_read_b128 {vr(O+8*w+4*part,4)}, v{LW} offset:{16384 + w*8192 + part*4096}")
    for i in range(2):
        Pr, Pi, Qr, Qi = O+16*i, O+16*i+4, O+16*i+8, O+16*i+12
        k(f"s_waitcnt lgkmcnt({6 - 2*i})")
        Tr, Ti = DR + 8*i, DR + 8*i + 4
        for qq in (0, 2):
            k(f"v_pk_mul_f32 {vr(Tr+qq,2)}, {vr(Qr+qq,2)}, {vr(OC+qq,2)}")
            k(f"v_pk_mul_f32 {vr(Ti+qq,2)}, {vr(Qi+qq,2)}, {vr(OC+qq,2)}")
        for qq in (0, 2):
            k(f"v_pk_fma_f32 {vr(Tr+qq,2)}, {vr(Qi+qq,2)}, {vr(OS+qq,2)}, {vr(Tr+qq,2)} {neg}")
            k(f"v_pk_fma_f32 {vr(Ti+qq,2)}, {vr(Qr+qq,2)}, {vr(OS+qq,2)}, {vr(Ti+qq,2)}")
    for i in range(2):
        Pr, Pi = O+16*i, O+16*i+4
        Tr, Ti = DR + 8*i, DR + 8*i + 4
        k(f"s_waitcnt lgkmcnt({2 - 2*i})")
        for part, (P, T) in enumerate(((Pr, Tr), (Pi, Ti))):
            sc = "s[38:39]" if (i == 0 and part == 1) else "s[36:37]"
            for qq in (0, 2):
                for ab in range(2):
                    z = zf(ab, i, part) + qq
                    k(f"v_pk_fma_f32 {vr(z,2)}, {vr(P+qq,2)}, {sc}, {vr(z,2)}")
            for qq in (0, 2):
                for ab in range(2):
                    z = zf(ab, i, part) + qq
                    k(f"v_pk_fma_f32 {vr(z,2)}, {vr(T+qq,2)}, {sc}, {vr(z,2)} " + (neg if ab else ''))
        for ab in range(2):
            for q in range(4):
                k(f"v_cvt_pk_bf16_f32 v{ZL+8*ab+2*q+i}, v{zf(ab,i,0)+q}, v{zf(ab,i,1)+q}")
    for ab in range(2):
        for q in range(4):
            k(f"buffer_store_dwordx2 {vr(ZL+8*ab+2*q,2)}, v{ZO}, s[12:15], {'s26' if ab else '0'} offen offset:{256*q}")
    k("s_endpgm")
```

```python
import sys
from rows import *
from gemm import *

def multi(name, roles):
    k = Kernel(name)
    base = 0
    labs = []
    for n, (cnt, fn) in enumerate(roles):
        labs.append(f"L_{name}_r{n}")
    hi = 0
    for n, (cnt, fn) in enumerate(roles):
        hi += cnt
        nxt = labs[n+1] if n+1 < len(roles) else f"L_{name}_end"
        if n: k(f"{labs[n]}:")
        k(f"s_cmp_ge_u32 s2, {hi}\ns_cbranch_scc1 {nxt}")
        k(f"s_sub_u32 s3, s2, {hi-cnt}")
        fn(k, 3)
    k(f"L_{name}_end:\ns_endpgm")
    return k.finalize(), hi

def build(path):
    hdr = "".join(l for l in open("interleave_layers__spectral_gfnet__dense_activation_gelu__prompt.s.ref").read().splitlines(True)[:12])
    hdr += "; Generated by gen/build.py (frequency-domain residual stream; MFMA FFT stages; LDS-DMA GEMMs)\n"
    k0, n0 = multi("prep_kernel", [(256, lambda k, s: role_rowfwd(k, 'x', s)), (256, role_wprep), (224, role_w2tile)])
    k1, n1 = multi("col_kernel", [(256, role_col), (224, role_w1fft)])
    k4, n4 = multi("rowf_kernel", [(256, lambda k, s: role_rowfwd(k, 'p', s))])
    k8, n8 = multi("rowi_kernel", [(256, role_rowinv)])
    g1 = gen_g1("g1_kernel"); g2 = gen_g2("g2_kernel")
    launches = [("prep_kernel", n0, 256, 16384), ("col_kernel", n1, 256, 49152), ("g1_kernel", 256, 256, G1_LDS), ("g2_kernel", 256, 256, G2_LDS),
                ("rowf_kernel", 256, 256, 32768), ("col_kernel", 256, 256, 49152), ("g1_kernel", 256, 256, G1_LDS), ("g2_kernel", 256, 256, G2_LDS),
                ("rowi_kernel", 256, 256, 0)]
    ks = [k0, k1, g1, g2, k4, k8]
    build_file(path, hdr, launches, ks)
    for kk in ks: print(kk.name, "instrs", len(kk.out), "nops", kk.nops, "vgpr", kk.maxv+1, "sgpr", kk.maxs+1)

if __name__ == "__main__":
    build(sys.argv[1] if len(sys.argv) > 1 else "interleave_layers__spectral_gfnet__dense_activation_gelu__prompt.s")
```

```python
import re

TRANS = ('v_exp_f32', 'v_log_f32', 'v_rcp_f32', 'v_rsq_f32', 'v_sqrt_f32', 'v_sin_f32', 'v_cos_f32', 'v_rcp_iflag_f32')
REG_RE = re.compile(r'^(-|abs\()?([vas])(?:(\d+)|\[(\d+):(\d+)\])\)?$')

def regs_of(tok):
    tok = tok.strip()
    if tok in ('vcc', 'exec', 'm0', 'vcc_lo', 'vcc_hi', 'exec_lo', 'exec_hi', 'scc'):
        return {tok.split('_')[0]}
    m = REG_RE.match(tok)
    if not m: return set()
    k = m.group(2)
    if m.group(3) is not None: return {f"{k}{m.group(3)}"}
    return {f"{k}{i}" for i in range(int(m.group(4)), int(m.group(5)) + 1)}

def split_ops(s):
    out, depth, cur = [], 0, ''
    for ch in s:
        if ch == '[': depth += 1
        if ch == ']': depth -= 1
        if ch == ',' and depth == 0:
            out.append(cur.strip()); cur = ''
        else: cur += ch
    if cur.strip(): out.append(cur.strip())
    return out

class Ins:
    def __init__(self, text):
        self.text = text
        t = text.split(';')[0].strip()
        self.label = t[:-1] if t.endswith(':') else None
        self.op = ''
        self.defs, self.uses = set(), set()
        self.kind = 'other'
        self.states = 1
        self.srcC = set(); self.srcAB = set(); self.passes = 0
        self.dpp = False; self.storedata = set(); self.lds_dma = False
        self.target = None
        if self.label or not t or t.startswith('.'):
            self.states = 0; self.kind = 'none'; return
        parts = t.split(None, 1)
        op = self.op = parts[0]
        rest = parts[1] if len(parts) > 1 else ''
        ops = split_ops(rest)
        mods = ''
        if ops:
            sp = ops[-1].split(None, 1)
            if len(sp) > 1: ops[-1] = sp[0]; mods = sp[1]
        self.mods = mods
        R = [regs_of(o) for o in ops]
        U = lambda l: set().union(*l) if l else set()
        if op == 's_nop':
            self.states = int(ops[0], 0) + 1; self.kind = 'nop'
        elif op.startswith('v_mfma'):
            self.kind = 'mfma'
            self.passes = 8 if '32x32x16' in op else (2 if '4x4x4' in op else 4)
            assert '32x32x16' in op or '16x16x32' in op or '4x4x4' in op
            self.defs = R[0]; self.srcAB = R[1] | R[2]; self.srcC = R[3]; self.uses = self.srcAB | self.srcC
        elif op.startswith('v_'):
            self.kind = 'valu'
            base = op.replace('_e32', '').replace('_e64', '').replace('_dpp', '').replace('_sdwa', '')
            self.base = base
            self.dpp = 'dpp' in op or 'row_' in mods or 'quad_perm' in mods
            if base in ('v_swap_b32', 'v_permlane32_swap_b32', 'v_permlane16_swap_b32'):
                self.defs = R[0] | R[1]; self.uses = R[0] | R[1]
            elif base.startswith('v_cmpx'):
                self.defs = R[0] | {'exec'}; self.uses = U(R[1:])
            elif base in ('v_add_co_u32', 'v_sub_co_u32', 'v_addc_co_u32', 'v_subb_co_u32'):
                self.defs = R[0] | R[1]; self.uses = U(R[2:])
            else:
                self.defs = R[0]; self.uses = U(R[1:])
                if base in ('v_fmac_f32', 'v_dot2c_f32_bf16', 'v_writelane_b32', 'v_pk_fmac_f16') or self.dpp or 'sdwa' in op:
                    self.uses |= R[0]
            self.trans = base in TRANS
        elif op.startswith('ds_'):
            self.kind = 'mem'
            if op.startswith('ds_read') or op.startswith('ds_bpermute') or op.startswith('ds_swizzle') or op.startswith('ds_permute'):
                self.defs = R[0]; self.uses = U(R[1:])
                if 'd16' in op: self.uses |= R[0]
            else:
                self.uses = U(R)
        elif op.startswith('buffer_') or op.startswith('global_'):
            self.kind = 'mem'
            islds = (' lds' in (' ' + mods)) or '_lds_' in op
            if islds:
                self.lds_dma = True; self.uses = U(R) | {'m0'}
            elif '_load' in op:
                self.defs = R[0]; self.uses = U(R[1:])
            else:
                self.uses = U(R)
                if 'x4' in op or 'x3' in op:
                    self.storedata = R[0] if op.startswith('buffer_') else R[1]
            self.vmem = True
        elif op.startswith('s_'):
            self.kind = 'salu'
            if op.startswith('s_cbranch') or op == 's_branch':
                self.target = ops[0]
            elif op.startswith('s_cmp') or op in ('s_waitcnt', 's_barrier', 's_endpgm', 's_setprio', 's_sleep'):
                self.uses = U(R)
            else:
                self.defs = R[0] if R else set(); self.uses = U(R[1:])
                if 'saveexec' in op: self.defs |= {'exec'}
        else:
            raise ValueError("unknown instr " + text)

def isv(s): return {r for r in s if r[0] in 'va' and r not in ('vcc',)}
def iss(s): return {r for r in s if r[0] == 's' or r in ('vcc',)}

def need(p, c):
    n = 0
    if p.kind == 'valu':
        dv = isv(p.defs); ds = iss(p.defs)
        if c.kind == 'mfma' and dv & c.uses: n = max(n, 2)
        if c.kind == 'valu':
            if c.dpp and dv & c.uses: n = max(n, 2)
            if c.base.startswith('v_permlane') and dv & c.uses: n = max(n, 2)
            if c.base in ('v_readlane_b32', 'v_readfirstlane_b32') and dv & c.uses: n = max(n, 1)
            if p.trans and not c.trans and dv & c.uses: n = max(n, 1)
            if p.trans and c.trans and dv & c.uses: n = max(n, 1)
            if ds & c.uses:
                n = max(n, 4 if c.base in ('v_readlane_b32', 'v_writelane_b32') else 2)
            if ('sdwa' in p.op or 'op_sel' in p.mods and not p.base.startswith('v_pk_')) and dv & (c.uses | c.defs): n = max(n, 1)
            if 'exec' in p.defs: n = max(n, 5 if c.dpp else 4)
        if p.base.startswith('v_dot2') and c.kind in ('valu', 'mem', 'mfma') and dv & (c.uses | c.defs):
            same_acc = c.kind == 'valu' and c.base == p.base and c.defs == p.defs
            if not same_acc: n = max(n, 3)
        if c.kind == 'mfma' and 'exec' in p.defs: n = max(n, 4)
        if c.kind == 'mem' and ds & c.uses: n = max(n, 5)
        if c.kind == 'salu' and ds & c.uses: n = max(n, 1)
        if c.kind == 'mem' and p.trans and dv & c.uses: n = max(n, 1)
    elif p.kind == 'mfma':
        big = p.passes == 8
        if c.kind == 'mfma':
            if p.defs & c.srcAB: n = max(n, 12 if big else 8)
            if p.defs & c.srcC:
                if not (p.defs == c.srcC and p.passes == c.passes): n = max(n, 10 if big else 6)
                elif p.passes == 2: n = max(n, 2)
            if p.defs & c.defs and not (p.defs == c.srcC and p.passes == c.passes): n = max(n, 10 if big else 6)
        elif c.kind in ('valu', 'mem'):
            if p.defs & (c.uses | c.defs): n = max(n, 12 if big else 8)
            if p.srcC & c.defs: n = max(n, 7 if big else 3)
    elif p.kind == 'salu':
        if 'm0' in p.defs and c.kind == 'mem' and c.lds_dma: n = max(n, 1)
    elif p.kind == 'mem':
        if p.storedata and c.kind in ('valu', 'mfma') and p.storedata & c.defs: n = max(n, 2)
        if p.storedata and c.kind == 'mem' and p.storedata & c.defs: n = max(n, 1)
    return n

MAXD = 13

class Kernel:
    def __init__(self, name):
        self.name = name; self.ins = []; self.nlab = 0
    def e(self, text):
        for line in text.split('\n'):
            line = line.strip()
            if line: self.ins.append(Ins(line))
    __call__ = e
    STAMPS = False
    def stamp(self, i):
        if not Kernel.STAMPS: return
        self.e(f"s_memrealtime s[{70+2*i}:{71+2*i}]\ns_waitcnt lgkmcnt(0)")
        self.nst = max(getattr(self, 'nst', 0), i+1)
    def cstamp(self, i):
        if not Kernel.STAMPS: return
        self.e(f"s_memtime s[{70+2*i}:{71+2*i}]\ns_waitcnt lgkmcnt(0)")
        self.nst = max(getattr(self, 'nst', 0), i+1)
    def endpgm(self):
        if Kernel.STAMPS:
            n = getattr(self, 'nst', 0)
            lab = self.lab('st')
            self.e(f"""s_waitcnt vmcnt(0) lgkmcnt(0)
            s_memrealtime s[96:97]
            s_load_dwordx2 s[98:99], s[0:1], 72
            s_mov_b64 exec, 1
            s_waitcnt lgkmcnt(0)
            s_load_dwordx2 s[66:67], s[0:1], 80
            s_bfe_u32 s95, s98, 0x40009
            s_lshl_b32 s95, s95, 12
            s_add_u32 s95, s95, s2
            s_lshl_b32 s95, s95, 3
            s_lshr_b32 s94, s69, 16
            s_add_u32 s95, s95, s94
            s_lshl_b32 s95, s95, 3
            s_add_u32 s95, s95, 0xC800000
            v_mov_b32 v1, s95
            v_mov_b32 v2, s96
            v_mov_b32 v3, s70
            s_waitcnt lgkmcnt(0)
            global_store_dwordx2 v1, v[2:3], s[66:67]
            s_and_b32 s95, s2, 0xffffff7f
            s_add_u32 s95, s95, s69
            s_cmp_lg_u32 s95, {Kernel.STAMPWG}
            s_cbranch_scc1 {lab}
            s_lshr_b32 s95, s2, 1
            s_and_b32 s95, s95, 64
            v_mov_b32 v1, s95""")
            for i in range(n):
                self.e(f"v_mov_b32 v3, s{70+2*i}\nglobal_store_dword v1, v3, s[98:99] offset:{4*i}")
            self.e(f"global_store_dword v1, v2, s[98:99] offset:60")
            self.e(f"{lab}:")
            self.nst = 0
        self.e("s_endpgm")
    STAMPWG = 0
    def startstamp(self):
        if Kernel.STAMPS:
            self.e("v_readfirstlane_b32 s69, v0\ns_lshr_b32 s69, s69, 6\ns_lshl_b32 s69, s69, 16")
            self.stamp(0)
    def lab(self, base):
        self.nlab += 1; return f"L_{self.name}_{base}_{self.nlab}"
    def _need_before(self, hist, c):
        d = 0; req = 0
        for p in reversed(hist):
            if d >= MAXD: break
            n = need(p, c)
            if n > d: req = max(req, n - d)
            d += p.states
        return req
    def finalize(self):
        out = []
        self.nops = 0
        for c in self.ins:
            if c.kind != 'none':
                r = self._need_before(out[-40:], c)
                if r > 0:
                    out.append(Ins(f"s_nop {r-1}")); self.nops += r
            out.append(c)
        labs = {c.label: i for i, c in enumerate(out) if c.label}
        for j, c in enumerate(out):
            if c.target is not None:
                i = labs[c.target]
                hist = list(out[max(0, j-40):j+1])
                for k in range(i, min(len(out), i+30)):
                    n = out[k]
                    if n.kind != 'none':
                        r = self._need_before(hist, n)
                        assert r == 0, f"hazard across branch {c.text} -> {n.text} needs {r}"
                    hist.append(n)
        self.out = out
        maxv = maxa = maxs = -1
        for c in out:
            for r in c.defs | c.uses:
                if r[0] == 'v' and r != 'vcc': maxv = max(maxv, int(r[1:]))
                elif r[0] == 'a': maxa = max(maxa, int(r[1:]))
                elif r[0] == 's' and r != 'scc': maxs = max(maxs, int(r[1:]))
        self.maxv, self.maxa, self.maxs = maxv, maxa, maxs
        return self
    def text(self):
        s = f".globl {self.name}\n.p2align 8\n.type {self.name},@function\n{self.name}:\n"
        for c in self.out:
            s += (c.text if c.label else "  " + c.text) + "\n"
        return s
    def desc(self):
        acc = max(4, (self.maxv + 1 + 3) // 4 * 4)
        nv = acc + self.maxa + 1 if self.maxa >= 0 else self.maxv + 1
        assert acc <= 256 and nv <= 512 and self.maxs < 102
        return f""".p2align 6
.amdhsa_kernel {self.name}
  .amdhsa_next_free_vgpr {nv}
  .amdhsa_next_free_sgpr {max(self.maxs + 1, 16)}
  .amdhsa_accum_offset {acc}
  .amdhsa_group_segment_fixed_size 0
  .amdhsa_kernarg_size 88
  .amdhsa_user_sgpr_count 2
  .amdhsa_user_sgpr_kernarg_segment_ptr 1
  .amdhsa_system_sgpr_workgroup_id_x 1
.end_amdhsa_kernel
"""

def vr(a, n=1): return f"v{a}" if n == 1 else f"v[{a}:{a+n-1}]"
def sr(a, n=1): return f"s{a}" if n == 1 else f"s[{a}:{a+n-1}]"
import struct
def fhex(x): return "0x%08x" % struct.unpack('<I', struct.pack('<f', x))[0]

def build_file(path, header, launches, kernels):
    s = header
    for (k, grid, block, lds) in launches:
        s += f"; @launch kernel={k} grid=({grid},1,1) block=({block},1,1) lds={lds}\n"
    s += '.amdgcn_target "amdgcn-amd-amdhsa--gfx950"\n.text\n'
    for k in kernels: s += k.text()
    s += '.section .rodata,"a"\n'
    for k in kernels: s += k.desc()
    open(path, 'w').write(s)
```

```python
from asm import *
import math
A_X, A_WR, A_WI, A_W1, A_B1, A_W2, A_B2, A_OUT, A_DBG, A_WS = 0, 8, 16, 32, 40, 48, 56, 64, 72, 80
MB = 1 << 20
WS_Z, SZ_Z = 0, 4*MB
WS_RS, SZ_RS = 4*MB, 16384
WS_WT, SZ_WT = 5*MB, 4*MB
WS_W1, SZ_W1 = 9*MB, 3584*2048
WS_W2, SZ_W2 = 16*MB, 3584*2048
WS_H,  SZ_H  = 24*MB, 2048*3584*2
WS_P,  SZ_P  = 40*MB, 8*MB
R2 = math.sqrt(0.5)

def srd(k, d, base, off, size):
    if off:
        k(f"s_add_u32 s{d}, s{base}, {hex(off)}\ns_addc_u32 s{d+1}, s{base+1}, 0")
    else:
        k(f"s_mov_b32 s{d}, s{base}\ns_mov_b32 s{d+1}, s{base+1}")
    k(f"s_mov_b32 s{d+2}, {hex(size)}\ns_mov_b32 s{d+3}, 0x20000")

def angle(k, dst, fl, mul, base):
    if mul == 0: k(f"v_mov_b32 v{dst}, v{base}")
    else: k(f"v_fmamk_f32 v{dst}, v{fl}, {fhex(float(mul))}, v{base}")

def trig_table(k, fl, base, muls, cdst, sdst, tmp):
    n = len(muls)
    angle(k, tmp, fl, muls[0], base)
    for i in range(n):
        t = tmp + (i & 1)
        if i + 1 < n: angle(k, tmp + ((i+1) & 1), fl, muls[i+1], base)
        k(f"v_cos_f32 v{cdst[i]}, v{t}\nv_sin_f32 v{sdst[i]}, v{t}")

def breg(r):
    return 8*(r >> 2) + (r & 3)

def cmul_pack(k, yr, yi, c, s, out, tmp, mode, rng=range(8), swap=False):
    L = list(rng)
    for idx in range(0, len(L), 2):
        grp = L[idx:idx+2]
        T = {p: tmp + 4*j for j, p in enumerate(grp)}
        for p in grp:
            r = 2*p
            k(f"v_pk_mul_f32 {vr(T[p],2)}, {vr(yr+r,2)}, {vr(c+r,2)}")
            k(f"v_pk_mul_f32 {vr(T[p]+2,2)}, {vr(yi+r,2)}, {vr(c+r,2)}")
        for p in grp:
            r = 2*p
            neg = "neg_lo:[1,0,0] neg_hi:[1,0,0]"
            k(f"v_pk_fma_f32 {vr(T[p],2)}, {vr(yi+r,2)}, {vr(s+r,2)}, {vr(T[p],2)} " + (neg if mode == 'pos' else ''))
            k(f"v_pk_fma_f32 {vr(T[p]+2,2)}, {vr(yr+r,2)}, {vr(s+r,2)}, {vr(T[p]+2,2)} " + (neg if mode == 'conj' else ''))
        for p in grp:
            r = 2*p
            for j in range(2):
                a, b = T[p]+j, T[p]+2+j
                if swap: a, b = b, a
                k(f"v_cvt_pk_bf16_f32 v{out+r+j}, v{a}, v{b}")

def wave_sum(k, regs):
    for m in ("row_shr:1 row_mask:0xf", "row_shr:2 row_mask:0xf", "row_shr:4 row_mask:0xf", "row_shr:8 row_mask:0xf",
              "row_bcast:15 row_mask:0xa", "row_bcast:31 row_mask:0xc"):
        for r in regs:
            k(f"v_add_f32_dpp v{r}, v{r}, v{r} {m} bank_mask:0xf")

M32 = "v_mfma_f32_32x32x16_bf16"
M16 = "v_mfma_f32_16x16x32_bf16"

def code_prefetch(k, target, nbytes, vtmp, lane, sp=50, back=False, wave_sgpr=None):
    lab = k.lab('pc')
    k(f"s_getpc_b64 s[{sp}:{sp+1}]\n{lab}:")
    if back:
        k(f"s_sub_u32 s{sp}, s{sp}, {lab}-{target}\ns_subb_u32 s{sp+1}, s{sp+1}, 0")
    else:
        k(f"s_add_u32 s{sp}, s{sp}, {target}-{lab}\ns_addc_u32 s{sp+1}, s{sp+1}, 0")
    k(f"v_lshlrev_b32 v{vtmp}, 7, v{lane}")
    n = -(-nbytes // 8192)
    for i in range(n):
        if i: k(f"v_add_u32 v{vtmp}, 0x2000, v{vtmp}")
        rem = nbytes - i*8192
        if rem < 8192:
            k(f"v_min_u32 v{vtmp}, {(nbytes-4) & ~3}, v{vtmp}")
        k(f"global_load_dword v{vtmp+1}, v{vtmp}, s[{sp}:{sp+1}]")
```

```python
from common import *

def interleave(k, mf, fill, frac=1.0):
    n = max(1, int(len(mf) * frac))
    done = 0
    for i, m in enumerate(mf):
        k(m)
        want = min(len(fill), -(-len(fill) * (i + 1) // n))
        while done < want:
            k(fill[done]); done += 1
    while done < len(fill):
        k(fill[done]); done += 1

G1_STAGE = 28672 + 16*1088
G1_SS = 3 * G1_STAGE
G1_LDS = G1_SS + 2048
ST_FL = "sc0 sc1"

def gen_g1(name, opt={}):
    k = Kernel(name)
    NST = 16
    k(f"""s_cmp_ge_u32 s2, 256
    s_cbranch_scc1 L_g1_end""")
    k.startstamp()
    k(f"""s_load_dwordx2 s[4:5], s[0:1], {A_WS}
    s_load_dwordx2 s[6:7], s[0:1], {A_B1}
    v_readfirstlane_b32 s22, v0
    s_and_b32 s20, s2, 1
    s_bfe_u32 s21, s2, 0x30003
    s_lshl3_add_u32 s20, s20, s21
    s_bfe_u32 s21, s2, 0x20001
    s_lshr_b32 s23, s2, 6
    s_lshl2_add_u32 s21, s21, s23
    s_lshr_b32 s22, s22, 6
    s_cmp_lt_u32 s22, 4
    s_cbranch_scc1 L_g1_mma""")
    L, VA, VB, RS_, SS, D = 1, 2, 4, 8, 10, 12
    k(f"""s_sub_u32 s22, s22, 4
    v_and_b32 v{L}, 63, v0
    s_mul_i32 s25, s21, {16*28672}
    s_mul_i32 s26, s22, 7168
    s_add_u32 s25, s25, s26
    v_lshl_add_u32 v{VA}, v{L}, 4, s25
    s_lshl_b32 s25, s22, 16
    s_lshl_b32 s27, s20, 10
    s_add_u32 s25, s25, s27
    v_lshl_add_u32 v{VB}, v{L}, 4, s25
    v_add_u32 v{VA+1}, 4096, v{VA}
    v_add_u32 v{VB+1}, 0x4000, v{VB}
    v_add_u32 v{VB+2}, 0x8000, v{VB}
    v_add_u32 v{VB+3}, 0xc000, v{VB}
    s_mul_i32 s27, s22, {4*1088}
    s_add_u32 s27, s27, 28672
    s_mov_b32 s10, {SZ_W1}
    s_mov_b32 s11, 0x20000
    s_mov_b32 s14, {SZ_Z}
    s_mov_b32 s15, 0x20000
    s_waitcnt lgkmcnt(0)
    s_add_u32 s8, s4, {WS_W1}
    s_addc_u32 s9, s5, 0
    s_mov_b32 s12, s4
    s_mov_b32 s13, s5""")
    def dma(st):
        ring = (st % 3) * G1_STAGE
        k(f"s_mov_b32 s30, {st*28672}\ns_mov_b32 s31, {st*262144}")
        for j in range(4):
            k(f"s_add_u32 m0, s27, {ring + j*1088}")
            k(f"buffer_load_dwordx4 v{VB+j}, s[12:15], s31 offen lds")
        for j in range(7):
            if j % 4 == 0: k(f"s_add_u32 m0, s26, {ring + (j//4)*4096}")
            k(f"buffer_load_dwordx4 v{VA+j//4}, s[8:11], s30 offen offset:{(j%4)*1024} lds")
    dma(0); dma(1)
    if opt.get('lprio'): k(f"s_setprio {opt['lprio']}")
    k(f"""v_lshl_add_u32 v{RS_}, v{L}, 4, s27
    v_add_u32 v{RS_+1}, {2*G1_STAGE}, v{RS_}
    v_mov_b32 v{SS}, 0
    v_mov_b32 v{SS+1}, 0""")
    for i in range(NST):
        k(f"s_waitcnt vmcnt({11 if i+1 < NST else 0})\ns_barrier")
        if i + 2 < NST: dma(i+2)
        ring = i % 3
        for j in range(4):
            k(f"ds_read_b128 {vr(D+4*j,4)}, v{RS_+(ring>>1)} offset:{(ring&1)*G1_STAGE + j*1088}")
        for j in range(4):
            k(f"s_waitcnt lgkmcnt({3-j})")
            for q in (0, 2, 1, 3):
                k(f"v_dot2_f32_bf16 v{SS+(q>>1)}, v{D+4*j+q}, v{D+4*j+q}, v{SS+(q>>1)}")
    k(f"""s_lshl_b32 s25, s22, 9
    s_add_u32 s25, s25, {G1_SS}
    v_lshl_add_u32 v{RS_}, v{L}, 3, s25
    ds_write_b64 v{RS_}, {vr(SS,2)}
    s_waitcnt lgkmcnt(0)
    s_barrier""")
    for (lab, nb, back) in opt.get('next', []):
        code_prefetch(k, lab, nb, D, L, back=back)
    k("s_endpgm")
    ACC = 0
    FA = [112, 156]; FB = [140, 184]
    SS = 200; RA = 204; RB = 210
    BL = 214; L = 228; VS = 229; T = 230; VH = 238; VH6 = 239; SX = 240
    acc = lambda t, st: ACC + 16*t + 4*st
    k("L_g1_mma:")
    if opt.get('mprio'): k(f"s_setprio {opt['mprio']}")
    k(f"""v_and_b32 v{L}, 63, v0
    s_and_b32 s23, s22, 1
    s_lshr_b32 s24, s22, 1
    s_mul_i32 s28, s21, 448
    s_lshl_b32 s29, s23, 8
    s_add_u32 s29, s29, s28
    v_lshrrev_b32 v{T}, 4, v{L}
    v_lshl_add_u32 v{T+1}, v{T}, 3, s29
    s_lshl_b32 s29, s23, 5
    s_add_u32 s29, s29, s28
    v_lshl_add_u32 v{T+2}, v{T}, 3, s29
    v_and_b32 v{T+3}, 15, v{L}
    v_and_b32 v{T+4}, 7, v{L}
    v_xor_b32 v{T+4}, v{T+4}, v{T}
    v_lshlrev_b32 v{T+4}, 4, v{T+4}
    v_lshl_add_u32 v{T+4}, v{T+3}, 7, v{T+4}
    s_mul_i32 s28, s23, {7*2048}
    v_add_u32 v{RA}, s28, v{T+4}
    v_xor_b32 v{RA+1}, 64, v{RA}
    v_mul_u32_u24 v{T+4}, {2*1088}, v{T}
    v_lshl_add_u32 v{T+4}, v{T+3}, 3, v{T+4}
    s_lshl_b32 s28, s24, 9
    s_add_u32 s28, s28, 28672
    v_add_u32 v{RB}, s28, v{T+4}
    s_lshl_b32 s28, s24, 8
    s_add_u32 s28, s28, {G1_SS}
    v_lshl_add_u32 v{VS}, v{T+3}, 2, s28""")
    for r in (1, 2):
        k(f"v_add_u32 v{RA+2*r}, {r*G1_STAGE}, v{RA}\nv_add_u32 v{RA+2*r+1}, {r*G1_STAGE}, v{RA+1}\nv_add_u32 v{RB+r}, {r*G1_STAGE}, v{RB}")
    k(f"""s_mul_i32 s28, s20, 112
    s_mul_i32 s29, s21, 7
    s_add_u32 s28, s28, s29
    s_lshl_b32 s28, s28, 13
    s_lshl_b32 s29, s24, 12
    s_add_u32 s28, s28, s29
    s_lshl_b32 s29, s23, 15
    s_add_u32 s29, s29, s28
    v_lshl_add_u32 v{VH}, v{L}, 4, s29
    s_lshl_b32 s29, s23, 10
    s_add_u32 s29, s29, s28
    s_add_u32 s29, s29, {3*8192}
    v_lshl_add_u32 v{VH6}, v{L}, 4, s29
    s_waitcnt lgkmcnt(0)""")
    srd(k, 16, 6, 0, 7168)
    srd(k, 12, 4, WS_H, SZ_H)
    for (lab, nb, back) in opt.get('self', []):
        lab2 = k.lab('nopf')
        k(f"s_cmp_ge_u32 s2, 16\ns_cbranch_scc1 {lab2}")
        code_prefetch(k, lab, nb, T+4, L, back=back)
        k(f"{lab2}:")
    bias_loads = [f"buffer_load_dwordx2 {vr(BL+2*t,2)}, v{T+1}, s[16:19], 0 offen offset:{32*t}" for t in range(6)]
    bias_loads.append(f"buffer_load_dwordx2 {vr(BL+12,2)}, v{T+2}, s[16:19], 0 offen offset:192")
    def reads(st, ksub, s):
        ring = st % 3
        a = [f"ds_read_b128 {vr(FA[s]+4*t,4)}, v{RA+2*ring+ksub} offset:{t*2048}" for t in range(7)]
        b = [f"ds_read_b64 {vr(FB[s]+4*j+2*hi,2)}, v{RB+ring} offset:{(8*ksub+hi)*1088 + j*128}" for j in range(4) for hi in range(2)]
        return [a[0]] + b + a[1:]
    def mfmas(s, first=False):
        return [f"{M16} {vr(acc(t,st),4)}, {vr(FA[s]+4*t,4)}, {vr(FB[s]+4*st,4)}, {'0' if first else vr(acc(t,st),4)}" for t in range(7) for st in range(4)]
    k.stamp(1)
    fr = opt.get('frac', 0.6)
    for i in range(NST + 1):
        k("s_waitcnt lgkmcnt(0)\ns_barrier")
        if i == 0: k.stamp(2); k.cstamp(8)
        if i < NST:
            fill = reads(i, 0, 0)
            if i == 12: fill = fill + bias_loads
        else:
            fill = [f"ds_read2st64_b32 {vr(SX+4*st+2*j,2)}, v{VS} offset0:{4*j} offset1:{4*j+2}" if False else
                    f"ds_read_b32 v{SX+4*st+j}, v{VS} offset:{64*st + 512*j}" for st in range(4) for j in range(4)]
        if i > 0: interleave(k, mfmas(1), fill, fr)
        else:
            for x in fill: k(x)
        if i < NST:
            if i == 0:
                m = mfmas(0, True); rd = reads(i, 1, 1)
                k("s_waitcnt lgkmcnt(0)")
                interleave(k, m, rd, fr)
            else:
                k("s_waitcnt lgkmcnt(0)")
                interleave(k, mfmas(0), reads(i, 1, 1), fr)
    k.stamp(3); k.cstamp(9)
    BF = FA[0]; RSV = SS
    k("s_waitcnt vmcnt(0) lgkmcnt(0)")
    for st in range(4): k(f"v_add_f32 v{SX+4*st}, v{SX+4*st}, v{SX+4*st+1}")
    for st in range(4): k(f"v_add_f32 v{SX+4*st+2}, v{SX+4*st+2}, v{SX+4*st+3}")
    k(f"v_mov_b32 v{T}, {fhex(1e-5)}")
    for st in range(4): k(f"v_add_f32 v{SS+st}, v{SX+4*st}, v{SX+4*st+2}")
    for st in range(4): k(f"v_fmamk_f32 v{SS+st}, v{SS+st}, {fhex(2/(1024*1024))}, v{T}")
    for st in range(4): k(f"v_rsq_f32 v{SS+st}, v{SS+st}")
    for t in range(7):
        for j in range(2):
            k(f"v_lshlrev_b32 v{BF+4*t+2*j}, 16, v{BL+2*t+j}\nv_and_b32 v{BF+4*t+2*j+1}, 0xffff0000, v{BL+2*t+j}")
    for st in range(4): k(f"v_mul_f32 v{SS+st}, {fhex(2/1024)}, v{SS+st}")
    c2 = -2*math.sqrt(2/math.pi)*math.log2(math.e); c1 = c2*0.044715
    C2 = T
    k(f"s_mov_b32 s36, {fhex(c1)}\ns_mov_b32 s37, {fhex(c1)}\nv_mov_b32 v{C2}, {fhex(c2)}\nv_mov_b32 v{C2+1}, {fhex(c2)}")
    OUT = FA[1]; TMP = FB[0]
    def gelu_group(items):
        n = len(items)
        for j, (a, b, st, o) in enumerate(items):
            sel = "op_sel_hi:[1,0,1]" if st % 2 == 0 else "op_sel:[0,1,0] op_sel_hi:[1,1,1]"
            k(f"v_pk_fma_f32 {vr(a,2)}, {vr(a,2)}, {vr(RSV+(st&2),2)}, {vr(b,2)} {sel}")
        for j, (a, b, st, o) in enumerate(items): k(f"v_pk_mul_f32 {vr(TMP+2*j,2)}, {vr(a,2)}, {vr(a,2)}")
        for j, (a, b, st, o) in enumerate(items): k(f"v_pk_fma_f32 {vr(TMP+2*j,2)}, {vr(TMP+2*j,2)}, s[36:37], {vr(C2,2)}")
        for j, (a, b, st, o) in enumerate(items): k(f"v_pk_mul_f32 {vr(TMP+2*j,2)}, {vr(TMP+2*j,2)}, {vr(a,2)}")
        for j in range(2*n): k(f"v_exp_f32 v{TMP+j}, v{TMP+j}")
        for j in range(n): k(f"v_pk_add_f32 {vr(TMP+2*j,2)}, {vr(TMP+2*j,2)}, 1.0 op_sel_hi:[1,0]")
        for j in range(2*n): k(f"v_rcp_f32 v{TMP+j}, v{TMP+j}")
        for j, (a, b, st, o) in enumerate(items): k(f"v_pk_mul_f32 {vr(TMP+2*j,2)}, {vr(TMP+2*j,2)}, {vr(a,2)}")
        for j, (a, b, st, o) in enumerate(items): k(f"v_cvt_pk_bf16_f32 v{o}, v{TMP+2*j}, v{TMP+2*j+1}")
    cnt = 0
    for st2 in range(2):
        o = OUT + 4*(cnt % 6); cnt += 1
        items = [(acc(6, 2*st2+tt)+2*j, BF+24+2*j, 2*st2+tt, o+2*tt+j) for tt in range(2) for j in range(2)]
        gelu_group(items)
        k(f"buffer_store_dwordx4 {vr(o,4)}, v{VH6}, s[12:15], 0 offen offset:{st2*2048} {ST_FL}")
    for pr in range(3):
        k(f"s_mov_b32 s30, {pr*8192}")
        for st in range(4):
            o = OUT + 4*(cnt % 6); cnt += 1
            items = [(acc(2*pr+tt, st)+2*j, BF+4*(2*pr+tt)+2*j, st, o+2*tt+j) for tt in range(2) for j in range(2)]
            gelu_group(items)
            k(f"buffer_store_dwordx4 {vr(o,4)}, v{VH}, s[12:15], s30 offen offset:{st*1024} {ST_FL}")
    k.stamp(4)
    k.endpgm()
    k("L_g1_end:\ns_endpgm")
    return k.finalize()

G2_NS = 4
G2_LDS = G2_NS * 32768

def gen_g2(name, opt={}):
    k = Kernel(name)
    NST = 28
    k(f"""s_cmp_ge_u32 s2, 256
    s_cbranch_scc1 L_g2_end""")
    k.startstamp()
    k(f"""s_load_dwordx2 s[4:5], s[0:1], {A_WS}
    s_load_dwordx4 s[8:11], s[0:1], {A_W2}
    v_readfirstlane_b32 s22, v0
    s_and_b32 s20, s2, 3
    s_bfe_u32 s21, s2, 0x20003
    s_lshl2_add_u32 s20, s20, s21
    s_lshr_b32 s21, s2, 5
    s_bfe_u32 s25, s2, 0x10002
    s_lshr_b32 s22, s22, 6
    s_cmp_lt_u32 s22, 4
    s_cbranch_scc1 L_g2_mma""")
    L, VB, VA, T = 1, 2, 4, 8
    k(f"""s_sub_u32 s22, s22, 4
    v_and_b32 v{L}, 63, v0
    s_mul_i32 s26, s25, 56
    s_lshl_b32 s28, s22, 12
    s_mul_i32 s27, s20, 112
    s_add_u32 s27, s27, s26
    s_lshl_b32 s27, s27, 13
    s_add_u32 s27, s27, s28
    v_lshl_add_u32 v{VB}, v{L}, 4, s27
    s_mul_i32 s27, s25, {1792*2048}
    s_lshl_b32 s26, s22, 15
    s_add_u32 s27, s27, s26
    s_lshl_b32 s26, s21, 8
    s_add_u32 s27, s27, s26
    v_lshrrev_b32 v{T}, 4, v{L}
    v_lshlrev_b32 v{T+1}, 1, v{T}
    v_xor_b32 v{T+1}, v{T+1}, v{L}
    v_and_b32 v{T+1}, 15, v{T+1}
    v_lshlrev_b32 v{T+1}, 4, v{T+1}
    v_lshl_add_u32 v{T+1}, v{T}, 11, v{T+1}
    v_add_u32 v{VA}, s27, v{T+1}
    v_xor_b32 v{VA+1}, 0x80, v{VA}
    v_add_u32 v{VA+1}, {8192-1024}, v{VA+1}
    v_add_u32 v{VA+2}, {2*(8192-1024)}, v{VA}
    v_add_u32 v{VA+3}, {2*(8192-1024)}, v{VA+1}
    s_mov_b32 s14, {SZ_H}
    s_mov_b32 s15, 0x20000
    s_waitcnt lgkmcnt(0)
    s_mov_b32 s10, {3584*2048}
    s_mov_b32 s11, 0x20000
    s_add_u32 s12, s4, {WS_H}
    s_addc_u32 s13, s5, 0""")
    def dma(st):
        ring = (st % G2_NS) * 32768
        k(f"s_add_u32 m0, s28, {ring+16384}\ns_mov_b32 s30, {st*16384}")
        for j in range(4): k(f"buffer_load_dwordx4 v{VB}, s[12:15], s30 offen offset:{j*1024} lds")
        k(f"s_add_u32 m0, s28, {ring}\ns_mov_b32 s30, {st*131072}")
        for j in range(4): k(f"buffer_load_dwordx4 v{VA+j}, s[8:11], s30 offen offset:{j*1024} lds")
    for st in range(G2_NS - 1): dma(st)
    for i in range(NST):
        inflight = min(G2_NS - 2, NST - 1 - i)
        k(f"s_waitcnt vmcnt({8*inflight})\ns_barrier")
        if i + G2_NS - 1 < NST: dma(i + G2_NS - 1)
    for (lab, nb, back) in opt.get('next', []):
        code_prefetch(k, lab, nb, T, L, back=back)
    k("s_endpgm")
    ACC = 0
    FA = [64, 96]; FB = [80, 112]
    RA, RB = 128, 136
    L, T = 138, 140
    BL = 144; VP = 152
    acc = lambda i, st: ACC + 16*i + 4*st
    k("L_g2_mma:")
    k(f"""v_and_b32 v{L}, 63, v0
    s_and_b32 s23, s22, 1
    s_lshr_b32 s24, s22, 1
    s_lshl_b32 s26, s21, 8
    s_lshl_b32 s27, s23, 7
    s_add_u32 s26, s26, s27
    v_lshrrev_b32 v{T}, 4, v{L}
    v_lshl_add_u32 v{T+1}, v{T}, 3, s26
    s_waitcnt lgkmcnt(0)""")
    srd(k, 16, 10, 0, 2048)
    k("s_cmp_eq_u32 s25, 0\ns_cselect_b32 s18, s18, 0")
    for i in range(4):
        k(f"buffer_load_dwordx2 {vr(BL+2*i,2)}, v{T+1}, s[16:19], 0 offen offset:{32*i}")
    for (lab, nb, back) in opt.get('self', []):
        lab2 = k.lab('nopf')
        k(f"s_cmp_ge_u32 s2, 16\ns_cbranch_scc1 {lab2}")
        code_prefetch(k, lab, nb, T+2, L, back=back)
        k(f"{lab2}:")
    k(f"""v_lshrrev_b32 v{T+1}, 2, v{L}
    v_and_b32 v{T+2}, 7, v{T+1}
    s_lshl_b32 s26, s23, 2
    v_xor_b32 v{T+2}, s26, v{T+2}
    v_lshlrev_b32 v{T+2}, 5, v{T+2}
    v_lshl_add_u32 v{T+2}, v{T+1}, 8, v{T+2}
    v_and_b32 v{T+1}, 3, v{L}
    v_lshl_add_u32 v{RA}, v{T+1}, 3, v{T+2}""")
    for t in range(1, 4): k(f"v_xor_b32 v{RA+2*t}, {32*t}, v{RA}")
    for t in range(4): k(f"v_add_u32 v{RA+2*t+1}, 0x10000, v{RA+2*t}")
    k(f"""s_lshl_b32 s26, s24, 12
    s_add_u32 s26, s26, 16384
    v_lshl_add_u32 v{RB}, v{L}, 4, s26
    v_add_u32 v{RB+1}, 0x10000, v{RB}
    v_and_b32 v{T+2}, 15, v{L}
    v_lshlrev_b32 v{T+2}, 6, v{T+2}
    v_lshl_add_u32 v{T+2}, v{T}, 4, v{T+2}
    s_lshl_b32 s26, s20, 13
    s_lshl_b32 s27, s24, 12
    s_add_u32 s26, s26, s27
    s_lshl_b32 s27, s25, 22
    s_add_u32 s26, s26, s27
    s_lshl_b32 s27, s21, 19
    s_add_u32 s26, s26, s27
    s_lshl_b32 s27, s23, 18
    s_add_u32 s26, s26, s27
    v_add_u32 v{VP}, s26, v{T+2}
    s_mov_b32 s30, 0x20000""")
    srd(k, 12, 4, WS_P, SZ_P)
    k("s_waitcnt vmcnt(0)")
    for i in range(4):
        for r in range(4):
            src = BL + 2*i + (r >> 1)
            if r & 1: k(f"v_and_b32 v{acc(i,0)+r}, 0xffff0000, v{src}")
            else: k(f"v_lshlrev_b32 v{acc(i,0)+r}, 16, v{src}")
    def reads(st, ksub, s):
        ring = st % G2_NS
        off = (ring & 1) * 32768 + ksub * 8192
        a = [f"ds_read_b64_tr_b16 {vr(FA[s]+4*j+2*jj,2)}, v{RA+2*j+(ring>>1)} offset:{off + jj*4096}" for j in range(4) for jj in range(2)]
        if (2*st + ksub) % 7 == 3:
            b = [f"ds_read_b64 {vr(FB[s]+4*j+2*th,2)}, v{RB+(ring>>1)} offset:{off + (j>>1)*2048 + th*1024 + (j&1)*8}" for j in range(4) for th in range(2)]
        else:
            b = [f"ds_read_b128 {vr(FB[s]+4*j,4)}, v{RB+(ring>>1)} offset:{off + j*1024}" for j in range(4)]
        return a[:2] + b + a[2:]
    def mfmas(s, first=False):
        if first:
            return [f"{M16} {vr(acc(i,st),4)}, {vr(FA[s]+4*i,4)}, {vr(FB[s]+4*st,4)}, {vr(acc(i,0),4)}" for i in range(4) for st in (1, 2, 3, 0)]
        return [f"{M16} {vr(acc(i,st),4)}, {vr(FA[s]+4*i,4)}, {vr(FB[s]+4*st,4)}, {vr(acc(i,st),4)}" for i in range(4) for st in range(4)]
    k.stamp(1)
    fr = opt.get('frac', 0.7)
    for i in range(NST + 1):
        if i < NST:
            k("s_waitcnt lgkmcnt(0)\ns_barrier")
            if i == 0: k.stamp(2); k.cstamp(8)
            fill = reads(i, 0, 0)
        else:
            k("s_waitcnt lgkmcnt(0)")
            fill = []
        if i > 0: interleave(k, mfmas(1), fill, fr)
        else:
            for x in fill: k(x)
        if i < NST:
            k("s_waitcnt lgkmcnt(0)")
            interleave(k, mfmas(0, i == 0), reads(i, 1, 1), fr)
    k.stamp(3); k.cstamp(9)
    OUT = FA[0]
    for rr in range(2):
        for st in range(4):
            o = OUT + 8*st + 4*rr
            for tp in range(2):
                for r2 in range(2):
                    a_ = acc(2*rr+tp, st) + 2*r2
                    k(f"v_cvt_pk_bf16_f32 v{o+2*tp+r2}, v{a_}, v{a_+1}")
            k(f"buffer_store_dwordx4 {vr(o,4)}, v{VP}, s[12:15], {'s30' if rr else '0'} offen offset:{1024*st} {ST_FL}")
    k.stamp(4)
    k.endpgm()
    k("L_g2_end:\ns_endpgm")
    return k.finalize()
```

```python
from common import *
ST_FL = "sc0 sc1"

class F2R:
    LANE = 1; T0 = 2
    MC = 12; MS = 20; TWC = 28; TWS = 44; M2 = 60
    END = 76

def f2_tables(k, R):
    t = R.T0
    L = R.LANE
    fi, hf, f32, b8, f1k, b4, fe, be, ta = t, t+1, t+2, t+3, t+4, t+5, t+6, t+7, t+8
    k(f"""v_and_b32 v{fi}, 31, v{L}
    v_lshrrev_b32 v{hf}, 5, v{L}
    v_lshrrev_b32 v{fe}, 1, v{fi}
    v_and_b32 v{fe}, 9, v{fe}
    v_lshrrev_b32 v{be}, 2, v{fi}
    v_and_b32 v{be}, 2, v{be}
    v_and_or_b32 v{fe}, v{fi}, 4, v{fe}
    v_or_b32 v{fe}, v{fe}, v{be}
    v_and_b32 v{be}, 1, v{fi}
    v_cvt_f32_u32 v{fi}, v{fi}
    v_cvt_f32_u32 v{hf}, v{hf}
    v_cvt_f32_u32 v{fe}, v{fe}
    v_cvt_f32_u32 v{be}, v{be}
    v_mul_f32 v{f32}, {fhex(1/32)}, v{fi}
    v_mul_f32 v{f1k}, {fhex(1/1024)}, v{fi}
    v_mul_f32 v{fe}, {fhex(1/32)}, v{fe}
    v_mul_f32 v{hf}, 4.0, v{hf}
    v_mul_f32 v{be}, {fhex(0.25)}, v{be}
    v_mul_f32 v{b4}, v{f1k}, v{hf}
    v_mul_f32 v{b8}, v{f32}, v{hf}
    v_fmac_f32 v{be}, v{fe}, v{hf}
    v_add_f32 v{b8}, v{b8}, v{b8}""")
    muls = [16*tt + j for tt in range(2) for j in range(8)]
    trig_table(k, f32, b8, muls, [R.TWC+i for i in range(16)], [R.TWS+i for i in range(16)], ta)
    for i in range(8):
        k(f"v_cvt_pk_bf16_f32 v{R.MC+i}, v{R.TWC+2*i}, v{R.TWC+2*i+1}")
        k(f"v_cvt_pk_bf16_f32 v{R.MS+i}, -v{R.TWS+2*i}, -v{R.TWS+2*i+1}")
    muls = [breg(r) for r in range(16)]
    trig_table(k, fe, be, muls, [R.TWC+i for i in range(16)], [R.TWS+i for i in range(16)], ta)
    for i in range(16):
        k(f"v_cvt_pk_bf16_f32 v{R.M2+i}, v{R.TWC+i}, v{R.TWS+i}")
    trig_table(k, f1k, b4, muls, [R.TWC+i for i in range(16)], [R.TWS+i for i in range(16)], ta)

def slot0_fix(k, R, yr, sn, smask, sdc):
    t = R.T0
    k(f"v_mov_b32 v{t}, s{sn}")
    k(f"v_add_f32 v{t}, s{sn+1}, v{t}")
    k(f"v_mul_f32 v{t}, {fhex(R2)}, v{t}")
    if sdc is not None: k(f"v_readlane_b32 s{sdc}, v{yr}, 0")
    k(f"v_cndmask_b32 v{yr}, v{yr}, v{t}, s[{smask}:{smask+1}]")
    k(f"v_cndmask_b32 v{yr+1}, v{yr+1}, 0, s[{smask}:{smask+1}]")

def z_coop_offset(k, dst, t, t2, srow8):
    k(f"""v_bfe_u32 v{t}, v0, 4, 3
    v_xor_b32 v{t}, v{t}, v0
    v_lshrrev_b32 v{t2}, 2, v{t}
    v_and_b32 v{t}, 3, v{t}
    v_lshl_add_u32 v{dst}, v{t}, 4, s{srow8}
    v_lshl_add_u32 v{dst}, v{t2}, 14, v{dst}""")

def z_unit_addr(k, dst, L, t, swave, base):
    k(f"""v_bfe_u32 v{t}, v{L}, 1, 3
    v_xor_b32 v{t}, s{swave}, v{t}
    v_lshlrev_b32 v{t}, 4, v{t}
    v_lshl_add_u32 v{dst}, v{L}, 7, v{t}
    v_add_u32 v{dst}, {base}, v{dst}
    v_xor_b32 v{dst+1}, 64, v{dst}""")

def row_of_pos(k, d, p, t):
    k(f"""s_and_b32 s{d}, s{p}, 0x700
    s_bfe_u32 s{t}, s{p}, 0x50001
    s_or_b32 s{d}, s{d}, s{t}
    s_and_b32 s{t}, s{p}, 64
    s_lshl1_add_u32 s{d}, s{t}, s{d}
    s_and_b32 s{t}, s{p}, 128
    s_lshr_b32 s{t}, s{t}, 1
    s_or_b32 s{d}, s{d}, s{t}""")

ROWF_LDS = {'x': 32768, 'p': 49152}

def role_rowfwd(k, mode, sid):
    R = F2R
    ninp = 1 if mode == 'x' else 2
    L = R.LANE
    X = 76
    YR = [108, 140]; YI = [124, 156] if mode == 'p' else [92, 124]
    if mode == 'x': YR = [108, 140]
    PK = [X, 12] if mode == 'x' else [X, X+16]
    B0 = 156 if mode == 'x' else 172
    ZG, ZU, TA, RO, DC, LC = B0, B0+2, B0+4, B0+5, B0+6, B0+1
    Z1 = B0 + 8
    ZB = 16384 * ninp
    k(f"""s_load_dwordx2 s[4:5], s[0:1], {A_WS}
    s_load_dwordx2 s[6:7], s[0:1], {A_X}
    v_readfirstlane_b32 s22, v0
    v_and_b32 v{L}, 63, v0
    s_and_b32 s20, s{sid}, 7
    s_lshr_b32 s21, s{sid}, 3
    s_lshl_b32 s20, s20, 5
    s_add_u32 s20, s20, s21
    s_lshl_b32 s21, s20, 6
    s_lshr_b32 s22, s22, 6
    s_lshl_b32 s20, s20, 3
    s_lshl1_add_u32 s20, s22, s20
    s_mul_i32 s24, s22, {4096*ninp}""")
    if mode == 'x':
        row_of_pos(k, 23, 20, 25)
        k(f"""v_lshrrev_b32 v3, 5, v{L}
        v_and_b32 v2, 31, v{L}
        v_lshlrev_b32 v2, 4, v2
        v_lshl_add_u32 v2, v3, 16, v2
        s_lshl_b32 s23, s23, 11
        v_add_u32 v2, s23, v2
        s_waitcnt lgkmcnt(0)""")
        srd(k, 8, 6, 0, 4*MB)
        for i in range(4):
            k(f"s_add_u32 m0, s24, {512*i}\nbuffer_load_dwordx4 v2, s[8:11], 0 offen offset:{512*i} lds")
        z_coop_offset(k, ZG, 3, 4, 21)
        srd(k, 12, 4, WS_Z, SZ_Z)
    else:
        k(f"""v_lshrrev_b32 v3, 5, v{L}
        v_bfe_u32 v2, v{L}, 2, 3
        v_lshlrev_b32 v2, 17, v2
        v_lshl_add_u32 v2, v3, 6, v2
        v_and_b32 v3, 3, v{L}
        v_lshl_add_u32 v2, v3, 4, v2
        s_lshl_b32 s23, s20, 6
        v_add_u32 v2, s23, v2""")
        z_coop_offset(k, ZG, 3, 4, 21)
        k("s_waitcnt lgkmcnt(0)")
        srd(k, 8, 4, WS_P, SZ_P)
        for i in (0, 4, 1, 5, 2, 6, 3, 7):
            k(f"s_add_u32 m0, s24, {1024*i}\ns_mov_b32 s25, {i*MB}\nbuffer_load_dwordx4 v2, s[8:11], s25 offen lds")
        srd(k, 12, 4, WS_Z, SZ_Z)
        k(f"s_lshl_b32 s23, s22, 10")
        for it in range(4):
            k(f"s_add_u32 m0, s23, {ZB + 4096*it}\ns_mov_b32 s25, {it*MB}\nbuffer_load_dwordx4 v{ZG}, s[12:15], s25 offen lds")
    srd(k, 16, 4, WS_RS, SZ_RS)
    k(f"s_lshl_b32 s23, s20, 2\nv_mov_b32 v{RO}, s23\ns_movk_i32 s30, 0x2000")
    if mode == 'p':
        k(f"buffer_load_dwordx2 {vr(DC,2)}, v{RO}, s[16:19], s30 offen")
    k(f"""v_lshrrev_b32 v2, 5, v{L}
    v_lshlrev_b32 v{TA}, 10, v2
    v_bfe_u32 v2, v{L}, 2, 2
    v_lshl_add_u32 v{TA}, v2, 6, v{TA}
    v_bfe_u32 v2, v{L}, 4, 1
    v_lshl_add_u32 v{TA}, v2, {5 if mode == 'x' else 3}, v{TA}
    v_and_b32 v2, 3, v{L}
    v_lshl_add_u32 v{TA}, v2, {3 if mode == 'x' else 4}, v{TA}
    v_add_u32 v{TA}, s24, v{TA}
    v_lshlrev_b32 v{LC}, 4, v0
    s_mov_b64 s[32:33], 1""")
    z_unit_addr(k, ZU, L, 2, 22, ZB)
    k.stamp(1)
    f2_tables(k, R)
    k.stamp(2)
    k(f"s_waitcnt vmcnt({5 if mode == 'p' else 0})")
    k.stamp(3)
    xs = [[], []]
    for row in range(2):
        for t in range(2):
            for inp in range(ninp):
                reg = X + inp*16 + row*8 + t*4
                for jj in range(2):
                    k(f"ds_read_b64_tr_b16 {vr(reg+2*jj,2)}, v{TA} offset:{inp*4096 + row*512 + 2048*t + 256*jj}")
                xs[row].append((reg, t))
    nrd = 4 * ninp * 2
    done = 0
    for row in range(2):
        for n, (reg, t) in enumerate(xs[row]):
            done += 2
            k(f"s_waitcnt lgkmcnt({min(15, nrd - done)})")
            for (acc, M) in ((YR[row], R.MC), (YI[row], R.MS)):
                c = "0" if n == 0 else vr(acc, 16)
                k(f"{M32} {vr(acc,16)}, {vr(reg,4)}, {vr(M+4*t,4)}, {c}")
    if mode == 'p':
        k("s_waitcnt vmcnt(0)\ns_barrier")
        for G in range(2):
            for half in range(2):
                k(f"ds_read_b128 {vr(Z1+8*G+4*half,4)}, v{ZU+half} offset:{8192*G}")
    D2 = [YI[0], YI[1]] if False else None
    for row in range(2):
        yr, yi = YR[row], YI[row]
        t = R.T0 + 8
        k(f"v_pk_add_f32 {vr(t,2)}, {vr(yr,2)}, {vr(yr+2,2)}")
        for p in range(2, 8):
            k(f"v_pk_add_f32 {vr(t,2)}, {vr(t,2)}, {vr(yr+2*p,2)}")
        k(f"v_sub_f32 v{t}, v{t}, v{t+1}")
        cmul_pack(k, yr, yi, R.TWC, R.TWS, PK[row], R.T0, 'conj', range(0, 2))
        k(f"v_readlane_b32 s{34+2*row}, v{t}, 0\nv_readlane_b32 s{34+2*row+1}, v{t}, 32")
        cmul_pack(k, yr, yi, R.TWC, R.TWS, PK[row], R.T0, 'conj', range(2, 8))
        if mode == 'p':
            if row == 0: k("s_waitcnt lgkmcnt(0)")
            for d in range(8):
                z = Z1 + 8*(d >> 2) + 4*((d >> 1) & 1) + 2*row + (d & 1)
                k(f"v_lshlrev_b32 v{yr+2*d}, 16, v{z}\nv_and_b32 v{yr+2*d+1}, 0xffff0000, v{z}")
            k(f"v_readlane_b32 s{40+row}, v{yr}, 0")
        for g in range(4):
            c = "0" if (g == 0 and mode == 'x') else vr(yr, 16)
            k(f"{M32} {vr(yr,16)}, {vr(R.M2+4*g,4)}, {vr(PK[row]+4*g,4)}, {c}")
    k.stamp(4)
    OUT = YI[0]
    for row in range(2):
        yr = YR[row]
        t = R.T0
        k(f"v_mov_b32 v{t}, s{34+2*row}")
        k(f"v_add_f32 v{t}, s{34+2*row+1}, v{t}")
        k(f"v_mul_f32 v{t}, {fhex(R2)}, v{t}")
        if mode == 'p': k(f"v_add_f32 v{t}, s{40+row}, v{t}")
        k(f"v_readlane_b32 s{38+row}, v{yr}, 0")
        k(f"v_cndmask_b32 v{yr}, v{yr}, v{t}, s[32:33]")
        k(f"v_cndmask_b32 v{yr+1}, v{yr+1}, 0, s[32:33]")
        for d in range(8):
            o = OUT + 8*(d >> 2) + 4*((d >> 1) & 1) + 2*row + (d & 1)
            k(f"v_cvt_pk_bf16_f32 v{o}, v{yr+2*d}, v{yr+2*d+1}")
    for G in range(2):
        for half in range(2):
            k(f"ds_write_b128 v{ZU+half}, {vr(OUT+8*G+4*half,4)} offset:{8192*G}")
    SS = [R.T0+8, R.T0+9]
    for d in range(8):
        for row in range(2):
            o = OUT + 8*(d >> 2) + 4*((d >> 1) & 1) + 2*row + (d & 1)
            k(f"v_dot2_f32_bf16 v{SS[row]}, v{o}, v{o}, {'0' if d == 0 else 'v%d' % SS[row]}")
    k("s_waitcnt lgkmcnt(0)\ns_barrier")
    CO = YR[0]
    for it in range(4):
        k(f"ds_read_b128 {vr(CO+4*it,4)}, v{LC} offset:{ZB + 4096*it}")
    wave_sum(k, SS)
    for it in range(4):
        k(f"s_mov_b32 s25, {it*MB}\ns_waitcnt lgkmcnt({3-it})\nbuffer_store_dwordx4 {vr(CO+4*it,4)}, v{ZG}, s[12:15], s25 offen {OPT.get('zst', ST_FL)}")
    k.stamp(5)
    t = R.T0
    k(f"""v_mov_b32 v{t+2}, {fhex(1e-5)}
    v_fmamk_f32 v{t}, v{SS[0]}, {fhex(2/(1024*1024))}, v{t+2}
    v_fmamk_f32 v{t+1}, v{SS[1]}, {fhex(2/(1024*1024))}, v{t+2}
    v_rsq_f32 v{t}, v{t}
    v_rsq_f32 v{t+1}, v{t+1}""")
    if mode == 'p':
        k(f"""v_add_f32 v{DC}, s38, v{DC}
        v_add_f32 v{DC+1}, s39, v{DC+1}
        v_subrev_f32 v{DC}, s40, v{DC}
        v_subrev_f32 v{DC+1}, s41, v{DC+1}""")
    else:
        k(f"v_mov_b32 v{DC}, s38\nv_mov_b32 v{DC+1}, s39")
    k(f"""s_mov_b32 exec_lo, 0
    s_mov_b32 exec_hi, 0x80000000
    buffer_store_dwordx2 {vr(t,2)}, v{RO}, s[16:19], 0 offen {ST_FL}
    buffer_store_dwordx2 {vr(DC,2)}, v{RO}, s[16:19], s30 offen {ST_FL}""")
    k.stamp(6)
    k.endpgm()

OPT = {}

def role_w1fft(k, sid):
    R = F2R
    L = R.LANE
    AS = 1040
    X = 76
    YR = [92, 124]; YI = [108, 140]
    PK = 156
    NY = 220
    VO, VL7, VH, TA = 224, 225, 226, 227
    k(f"""s_load_dwordx2 s[4:5], s[0:1], {A_WS}
    s_load_dwordx2 s[6:7], s[0:1], {A_W1}
    s_load_dwordx2 s[44:45], s[0:1], {A_W2}
    v_readfirstlane_b32 s22, v0
    v_and_b32 v{L}, 63, v0
    s_and_b32 s20, s{sid}, 7
    s_lshr_b32 s21, s{sid}, 3
    s_mul_i32 s20, s20, 28
    s_add_u32 s20, s20, s21
    s_lshr_b32 s22, s22, 6
    v_lshrrev_b32 v2, 1, v{L}
    v_mul_u32_u24 v2, 7168, v2
    v_and_b32 v3, 1, v{L}
    v_lshl_add_u32 v2, v3, 4, v2
    s_lshl_b32 s23, s20, 5
    s_mul_i32 s24, s22, {8*32*7168}
    s_add_u32 s23, s23, s24
    v_add_u32 v2, s23, v2
    s_mul_i32 s24, s22, {8*AS}
    s_waitcnt lgkmcnt(0)""")
    srd(k, 8, 6, 0, 3584*2048)
    for j in range(8):
        k(f"s_add_u32 m0, s24, {j*AS}\ns_mov_b32 s25, {j*32*7168}\nbuffer_load_dwordx4 v2, s[8:11], s25 offen lds")
    srd(k, 12, 4, WS_W1, SZ_W1)
    srd(k, 16, 44, 0, 3584*2048)
    k(f"""s_lshl_b32 s21, s{sid}, 15
    v_lshl_add_u32 v2, v0, 7, s21
    buffer_load_dword v{VO}, v2, s[16:19], 0 offen""")
    k(f"""s_mul_i32 s21, s20, 0x124a
    s_lshr_b32 s21, s21, 16
    s_mul_i32 s23, s21, 14
    s_sub_u32 s23, s20, s23
    s_sub_u32 s24, s23, 1
    s_cmp_eq_u32 s23, 7
    s_cselect_b32 s24, 13, s24
    s_cmp_le_u32 s23, 6
    s_cselect_b32 s23, s23, s24
    s_lshl_b32 s23, s23, 2
    s_add_u32 s23, s23, s22
    s_lshl_b32 s23, s23, 2
    v_lshrrev_b32 v{VH}, 3, v{L}
    v_mul_u32_u24 v{VH}, 28672, v{VH}
    v_and_b32 v{VL7}, 7, v{L}
    s_mul_i32 s25, s21, {16*28672}
    s_lshl_b32 s26, s23, 7
    s_add_u32 s25, s25, s26
    s_and_b32 s27, s23, 7
    s_mov_b64 s[32:33], 1""")
    k(f"""v_lshrrev_b32 v2, 5, v{L}
    v_bfe_u32 v3, v{L}, 2, 2
    v_lshl_add_u32 v2, v2, 3, v3
    v_mul_u32_u24 v{TA}, {AS}, v2
    v_and_b32 v2, 1, v{L}
    v_lshl_add_u32 v{TA}, v2, 7, v{TA}
    v_bfe_u32 v2, v{L}, 4, 1
    v_lshl_add_u32 v{TA}, v2, 6, v{TA}
    v_bfe_u32 v2, v{L}, 1, 1
    v_lshl_add_u32 v{TA}, v2, 5, v{TA}
    s_lshl_b32 s28, s22, 3
    v_add_u32 v{TA}, s28, v{TA}""")
    k.stamp(1)
    f2_tables(k, R)
    k.stamp(2)
    k("s_waitcnt vmcnt(1)\ns_barrier")
    k.stamp(3)
    def rd(T):
        for t in range(2):
            for jj in range(2):
                k(f"ds_read_b64_tr_b16 {vr(X+8*(T&1)+4*t+2*jj,2)}, v{TA} offset:{(16*t+4*jj)*AS + 256*T}")
    def st1(T):
        for t in range(2):
            for (acc, M) in ((YR[T&1], R.MC), (YI[T&1], R.MS)):
                k(f"{M32} {vr(acc,16)}, {vr(X+8*(T&1)+4*t,4)}, {vr(M+4*t,4)}, {'0' if t == 0 else vr(acc,16)}")
    rd(0); rd(1)
    k("s_waitcnt lgkmcnt(4)"); st1(0)
    T0 = R.T0
    for T in range(4):
        if T + 1 < 4:
            k(f"s_waitcnt lgkmcnt(0)")
            st1(T+1)
            if T + 2 < 4: rd(T+2)
        yr, yi = YR[T&1], YI[T&1]
        for rho in range(4):
            for fp in range(2):
                src = vr(yr+4*rho+2*fp, 2); d = vr(NY+2*fp, 2)
                if T == 0 and rho == 0: k(f"v_pk_add_f32 {d}, {src}, 0 op_sel_hi:[1,0]")
                else: k(f"v_pk_add_f32 {d}, {d}, {src}" + (" neg_lo:[0,1] neg_hi:[0,1]" if rho & 1 else ""))
        for rho in range(4):
            ti = 4*T + rho
            bc = lambda base: vr(base + (ti & ~1), 2)
            s2 = "op_sel_hi:[1,0]" if ti % 2 == 0 else "op_sel:[0,1] op_sel_hi:[1,1]"
            s3 = "op_sel_hi:[1,0,1]" if ti % 2 == 0 else "op_sel:[0,1,0] op_sel_hi:[1,1,1]"
            for fp in range(2):
                r = 4*rho + 2*fp; t = T0 + 4*fp
                k(f"v_pk_mul_f32 {vr(t,2)}, {vr(yr+r,2)}, {bc(R.TWC)} {s2}")
                k(f"v_pk_mul_f32 {vr(t+2,2)}, {vr(yi+r,2)}, {bc(R.TWC)} {s2}")
            for fp in range(2):
                r = 4*rho + 2*fp; t = T0 + 4*fp
                k(f"v_pk_fma_f32 {vr(t,2)}, {vr(yi+r,2)}, {bc(R.TWS)}, {vr(t,2)} {s3}")
                k(f"v_pk_fma_f32 {vr(t+2,2)}, {vr(yr+r,2)}, {bc(R.TWS)}, {vr(t+2,2)} {s3} neg_lo:[1,0,0] neg_hi:[1,0,0]")
            for fp in range(2):
                t = T0 + 4*fp
                for j in range(2):
                    k(f"v_cvt_pk_bf16_f32 v{PK+16*(2*fp+j)+ti}, v{t+j}, v{t+2+j}")
    k.stamp(4)
    D2 = [YR[0], YI[0], YR[1], YI[1]]
    for u in range(4):
        k(f"v_readlane_b32 s{34+2*u}, v{NY+u}, 0\nv_readlane_b32 s{35+2*u}, v{NY+u}, 32")
    for u in range(4):
        for g in range(4):
            k(f"{M32} {vr(D2[u],16)}, {vr(R.M2+4*g,4)}, {vr(PK+16*u+4*g,4)}, {'0' if g == 0 else vr(D2[u],16)}")
    k.stamp(5)
    k("s_waitcnt vmcnt(0)")
    for u in range(4):
        yr = D2[u]; OUT = R.TWC + 8*u
        slot0_fix(k, R, yr, 34+2*u, 32, None)
        for d in range(8):
            k(f"v_cvt_pk_bf16_f32 v{OUT+d}, v{yr+2*d}, v{yr+2*d+1}")
        k(f"""s_add_u32 s30, s27, {u}
        v_xor_b32 v{VO}, s30, v{VL7}
        v_lshl_add_u32 v{VO}, v{VO}, 4, v{VH}
        s_add_u32 s30, s25, {u*128}
        s_add_u32 s31, s25, {u*128 + 8*28672}
        buffer_store_dwordx4 {vr(OUT,4)}, v{VO}, s[12:15], s30 offen {ST_FL}
        buffer_store_dwordx4 {vr(OUT+4,4)}, v{VO}, s[12:15], s31 offen {ST_FL}""")
    k.stamp(6)
    k.endpgm()

def role_wprep(k, sid):
    k(f"""s_load_dwordx2 s[4:5], s[0:1], {A_WS}
    s_load_dwordx4 s[20:23], s[0:1], {A_WR}
    s_load_dwordx2 s[6:7], s[0:1], {A_W1}
    s_bfe_u32 s24, s{sid}, 0x20003
    s_bfe_u32 s25, s{sid}, 0x20005
    s_and_b32 s26, s{sid}, 7
    s_lshr_b32 s27, s{sid}, 7
    v_and_b32 v1, 127, v0
    v_lshrrev_b32 v2, 7, v0""")
    k(f"""s_lshl_b32 s28, s24, 7
    v_add_u32 v3, s28, v1
    v_mov_b32 v4, 0x200
    v_cmp_eq_u32 vcc, 0, v3
    s_lshl_b32 s28, s26, 8
    s_lshl_b32 s29, s25, 4
    s_add_u32 s28, s28, s29
    s_add_u32 s28, s28, s27
    v_cndmask_b32 v4, v3, v4, vcc
    v_lshl_add_u32 v5, v2, 3, s28
    v_mul_u32_u24 v5, 1026, v5
    v_lshl_add_u32 v5, v4, 1, v5
    s_waitcnt lgkmcnt(0)""")
    srd(k, 8, 20, 0, 2048*513*2)
    srd(k, 12, 22, 0, 2048*513*2)
    for cc in range(4):
        for q in range(4):
            off = (2*cc + 64*q) * 1026
            r = 8 + 4*cc + q
            k(f"s_mov_b32 s30, {off}")
            k(f"buffer_load_ushort v{r}, v5, s[8:11], s30 offen")
            k(f"buffer_load_ushort v{r+16}, v5, s[12:15], s30 offen")
    srd(k, 16, 6, 0, 3584*2048)
    k(f"""s_lshr_b32 s28, s{sid}, 3
    s_mul_i32 s28, s28, {32*7168}
    s_mul_i32 s29, s26, 896
    s_add_u32 s28, s28, s29
    v_lshrrev_b32 v3, 3, v0
    v_mul_u32_u24 v3, 7168, v3
    v_and_b32 v4, 7, v0
    v_min_u32 v4, 6, v4
    v_lshl_add_u32 v3, v4, 7, v3
    buffer_load_dword v42, v3, s[16:19], s28 offen""")
    k.stamp(1)
    srd(k, 16, 4, WS_WT, SZ_WT)
    k(f"""v_and_b32 v3, 7, v1
    v_lshlrev_b32 v4, 2, v2
    v_xor_b32 v3, v3, v4
    v_lshlrev_b32 v3, 4, v3
    v_lshl_add_u32 v3, v1, 7, v3""")
    for cc in range(1, 4): k(f"v_xor_b32 v{3+cc}, {16*cc}, v3")
    k(f"""v_lshrrev_b32 v40, 3, v0
    v_xor_b32 v41, v40, v0
    v_and_b32 v41, 7, v41
    v_lshlrev_b32 v41, 4, v41
    v_lshl_add_u32 v41, v40, 15, v41
    v_lshlrev_b32 v40, 4, v0
    s_lshl_b32 s28, s24, 20
    s_lshl_b32 s29, s27, 12
    s_add_u32 s28, s28, s29
    s_lshl_b32 s29, s26, 9
    s_add_u32 s28, s28, s29
    s_lshl_b32 s29, s25, 7
    s_add_u32 s28, s28, s29""")
    for cc in range(4):
        k(f"s_waitcnt vmcnt({8*(3-cc)+1})")
        for q in range(4):
            r = 8 + 4*cc + q
            k(f"v_lshl_or_b32 v{r}, v{r+16}, 16, v{r}")
        k(f"ds_write_b128 v{3+cc}, {vr(8+4*cc,4)}")
    k.stamp(3)
    k("s_waitcnt lgkmcnt(0)\ns_barrier")
    for it in range(4): k(f"ds_read_b128 {vr(24+4*it,4)}, v40 offset:{4096*it}")
    for it in range(4):
        k(f"s_add_u32 s29, s28, {8192*it}\ns_waitcnt lgkmcnt({3-it})\nbuffer_store_dwordx4 {vr(24+4*it,4)}, v41, s[16:19], s29 offen {ST_FL}")
    k.stamp(6)
    k.endpgm()

def role_pf(targets):
    def fn(k, sid):
        k("v_and_b32 v1, 63, v0")
        for (lab, nb, back) in targets:
            code_prefetch(k, lab, nb, 2, 1, back=back)
        k.e("s_endpgm")
    return fn

ROWI_LDS = 49152
def role_rowinv(k, sid):
    L = 1; T0 = 2
    MR, MI, TWC, TWS, M2 = 12, 20, 28, 44, 60
    ZL = 76
    VR = [92, 124]; VI = [108, 140]
    PK = [156, 172]
    CI = [188, 204]
    PP = 220
    ZG, ZU, RO, XO, DC, KL, PA = 236, 238, 237, 240, 242, 241, 244
    ZB = 32768
    k(f"""s_load_dwordx2 s[4:5], s[0:1], {A_WS}
    s_load_dwordx2 s[6:7], s[0:1], {A_OUT}
    v_readfirstlane_b32 s22, v0
    v_and_b32 v{L}, 63, v0
    s_and_b32 s20, s{sid}, 7
    s_lshr_b32 s21, s{sid}, 3
    s_lshl_b32 s20, s20, 5
    s_add_u32 s20, s20, s21
    s_lshl_b32 s21, s20, 6
    s_lshr_b32 s22, s22, 6
    s_lshl_b32 s20, s20, 3
    s_lshl1_add_u32 s20, s22, s20
    s_lshl_b32 s24, s22, 13
    s_lshl_b32 s23, s22, 10""")
    z_coop_offset(k, ZG, 3, 4, 21)
    k(f"""v_lshrrev_b32 v3, 5, v{L}
    v_bfe_u32 v2, v{L}, 2, 3
    v_lshlrev_b32 v2, 17, v2
    v_lshl_add_u32 v2, v3, 6, v2
    v_and_b32 v3, 3, v{L}
    v_lshl_add_u32 v2, v3, 4, v2
    s_lshl_b32 s26, s20, 6
    v_add_u32 v2, s26, v2
    s_waitcnt lgkmcnt(0)""")
    srd(k, 12, 4, WS_Z, SZ_Z)
    for it in range(4):
        k(f"s_add_u32 m0, s23, {ZB + 4096*it}\ns_mov_b32 s25, {it*MB}\nbuffer_load_dwordx4 v{ZG}, s[12:15], s25 offen lds")
    srd(k, 8, 4, WS_P, SZ_P)
    for i in range(8):
        k(f"s_add_u32 m0, s24, {1024*i}\ns_mov_b32 s25, {i*MB}\nbuffer_load_dwordx4 v2, s[8:11], s25 offen lds")
    srd(k, 16, 4, WS_RS, SZ_RS)
    k(f"""s_lshl_b32 s23, s20, 2
    v_mov_b32 v{RO}, s23
    s_movk_i32 s30, 0x2000
    buffer_load_dwordx2 {vr(DC,2)}, v{RO}, s[16:19], s30 offen""")
    srd(k, 40, 6, 0, 4*MB)
    row_of_pos(k, 23, 20, 25)
    k(f"""s_lshl_b32 s23, s23, 11
    s_mov_b32 s31, 0x10000
    v_and_b32 v2, 15, v{L}
    v_lshl_add_u32 v{XO}, v2, 6, s23
    v_lshrrev_b32 v2, 5, v{L}
    v_lshl_add_u32 v{XO}, v2, 5, v{XO}
    v_lshl_add_u32 v{PA}, v2, 3, s24
    v_bfe_u32 v2, v{L}, 4, 1
    v_lshl_add_u32 v{XO}, v2, 4, v{XO}
    v_bfe_u32 v2, v{L}, 3, 2
    v_lshl_add_u32 v{PA}, v2, 10, v{PA}
    v_and_b32 v2, 7, v{L}
    v_lshl_add_u32 v{PA}, v2, 6, v{PA}
    v_add_u32 v{PA+1}, 0x1000, v{PA}""")
    z_unit_addr(k, ZU, L, 2, 22, ZB)
    k.stamp(1)
    fi, hf, f32, b32, fp, p32, pb32, p1k, ta = T0, T0+1, T0+2, T0+3, T0+4, T0+5, T0+6, T0+7, T0+8
    k(f"""v_and_b32 v{fi}, 31, v{L}
    v_lshrrev_b32 v{hf}, 5, v{L}
    v_bfe_u32 v{fp}, v{L}, 2, 1
    v_lshlrev_b32 v{fp}, 4, v{fp}
    v_bfe_u32 v{b32}, v{L}, 3, 2
    v_lshl_add_u32 v{fp}, v{b32}, 2, v{fp}
    v_and_or_b32 v{fp}, v{L}, 3, v{fp}
    v_and_b32 v{b32}, 1, v{L}
    v_cvt_f32_u32 v{KL}, v{b32}
    v_cvt_f32_u32 v{fi}, v{fi}
    v_cvt_f32_u32 v{hf}, v{hf}
    v_cvt_f32_u32 v{fp}, v{fp}
    v_mul_f32 v{KL}, {fhex(-2*R2)}, v{KL}
    v_add_f32 v{KL}, {fhex(R2-1)}, v{KL}
    v_sub_f32 v{b32}, 1.0, v{hf}
    v_mul_f32 v{KL}, v{KL}, v{b32}
    v_mul_f32 v{hf}, 4.0, v{hf}
    v_mul_f32 v{f32}, {fhex(1/32)}, v{fi}
    v_mul_f32 v{p32}, {fhex(1/32)}, v{fp}
    v_mul_f32 v{p1k}, {fhex(1/1024)}, v{fp}
    v_mul_f32 v{b32}, v{f32}, v{hf}
    v_mul_f32 v{pb32}, v{p32}, v{hf}
    v_mul_f32 v{fp}, v{p1k}, v{hf}
    s_mov_b32 s36, {fhex(2/1024)}
    s_mov_b32 s37, {fhex(2/1024)}
    v_mul_f32 v{KL}, s36, v{KL}""")
    muls16 = [breg(r) for r in range(16)]
    trig_table(k, p32, pb32, muls16[:8], [TWC+i for i in range(8)], [TWS+i for i in range(8)], ta)
    for i in range(0, 8, 2):
        k(f"v_pk_mul_f32 {vr(TWC+i,2)}, {vr(TWC+i,2)}, s[36:37]\nv_pk_mul_f32 {vr(TWS+i,2)}, {vr(TWS+i,2)}, s[36:37]")
    for i in range(8):
        k(f"v_cvt_pk_bf16_f32 v{MR+i}, v{TWC+i}, -v{TWS+i}")
        k(f"v_cvt_pk_bf16_f32 v{MI+i}, v{TWS+i}, v{TWC+i}")
    trig_table(k, f32, b32, muls16, [TWC+i for i in range(16)], [TWS+i for i in range(16)], ta)
    for i in range(16):
        k(f"v_cvt_pk_bf16_f32 v{M2+i}, v{TWC+i}, -v{TWS+i}")
    trig_table(k, p1k, fp, muls16, [TWC+i for i in range(16)], [TWS+i for i in range(16)], ta)
    k.stamp(2)
    k("s_waitcnt vmcnt(9)\ns_barrier")
    k.stamp(3)
    for row in range(2):
        for G in range(2):
            for half in range(2):
                k(f"ds_read_b64 {vr(ZL+8*row+4*G+2*half,2)}, v{ZU+half} offset:{8192*G + 8*row}")
    for row in range(2):
        for G in range(2):
            k(f"s_waitcnt lgkmcnt({6 - 4*row - 2*G})")
            for (acc, M) in ((VR[row], MR), (VI[row], MI)):
                c = "0" if G == 0 else vr(acc, 16)
                k(f"{M32} {vr(acc,16)}, {vr(ZL+8*row+4*G,4)}, {vr(M+4*G,4)}, {c}")
        k(f"v_readlane_b32 s{34+row}, v{ZL+8*row}, 0")
    k("s_lshl_b32 s34, s34, 16\ns_lshl_b32 s35, s35, 16")
    k("s_waitcnt vmcnt(0)")
    k(f"v_mul_f32 v{DC}, {fhex(1/1024)}, v{DC}\nv_mul_f32 v{DC+1}, {fhex(1/1024)}, v{DC+1}")
    def pread(row, dst):
        for sp in range(2):
            for j in range(2):
                o8 = (4096*sp + 512*row + 32*j) // 8
                if o8 + 2 <= 255: k(f"ds_read2_b64 {vr(dst+8*sp+4*j,4)}, v{PA} offset0:{o8} offset1:{o8+2}")
                else: k(f"ds_read2_b64 {vr(dst+8*sp+4*j,4)}, v{PA+1} offset0:{o8-512} offset1:{o8-510}")
    def cinit(row, src):
        U = CI[row]; U2 = T0
        sel = "op_sel:[0,0] op_sel_hi:[1,0]" if row == 0 else "op_sel:[0,1] op_sel_hi:[1,1]"
        for d0 in range(0, 8, 4):
            for d in range(d0, d0+4):
                a = src + d; b = src + 8 + d
                k(f"v_lshlrev_b32 v{U+2*d}, 16, v{a}\nv_and_b32 v{U+2*d+1}, 0xffff0000, v{a}")
                k(f"v_lshlrev_b32 v{U2+2*(d-d0)}, 16, v{b}\nv_and_b32 v{U2+2*(d-d0)+1}, 0xffff0000, v{b}")
            for d in range(d0, d0+4):
                k(f"v_pk_add_f32 {vr(U+2*d,2)}, {vr(U+2*d,2)}, {vr(DC,2)} {sel}")
            for d in range(d0, d0+4):
                k(f"v_pk_add_f32 {vr(U+2*d,2)}, {vr(U+2*d,2)}, {vr(U2+2*(d-d0),2)}")
    pread(0, PP); pread(1, PK[1])
    k("s_waitcnt lgkmcnt(4)"); cinit(0, PP)
    k("s_waitcnt lgkmcnt(0)"); cinit(1, PK[1])
    for row in range(2):
        k(f"v_fmac_f32 v{VR[row]}, s{34+row}, v{KL}")
        for g in range(4):
            cmul_pack(k, VR[row], VI[row], TWC, TWS, PK[row], T0, 'pos', range(2*g, 2*g+2))
            k(f"{M32} {vr(CI[row],16)}, {vr(PK[row]+4*g,4)}, {vr(M2+4*g,4)}, {vr(CI[row],16)}")
    k.stamp(4)
    for row in range(2):
        O = VR[row]
        for d in range(8):
            k(f"v_cvt_pk_bf16_f32 v{O+d}, v{CI[row]+2*d}, v{CI[row]+2*d+1}")
        for d in range(4):
            k(f"v_permlane16_swap_b32 v{O+d}, v{O+4+d}")
        for j in range(2):
            k(f"buffer_store_dwordx4 {vr(O+4*j,4)}, v{XO}, s[40:43], {'s31' if row else '0'} offen offset:{1024*j} {ST_FL}")
    k.stamp(6)
    k.endpgm()

def role_col(k, sid):
    L = 1; T0 = 2
    MA, MBm, TWC, TWS = 12, 28, 44, 60
    WR, WI = 76, 92
    WL = 108
    DR, DI = [124, 228], [140, 156]
    ZL = 156
    ZF = 172
    RS = 204
    OC, OS = 212, 216
    ZO, RO, WO, LW, LR = 220, 221, 222, 223, 224
    PK = 228
    k(f"""s_load_dwordx2 s[4:5], s[0:1], {A_WS}
    v_readfirstlane_b32 s22, v0
    v_and_b32 v3, 31, v0
    v_lshrrev_b32 v4, 5, v0
    v_lshl_add_u32 v5, v4, 7, v3
    s_lshl_b32 s23, s{sid}, 14
    v_and_b32 v{L}, 63, v0
    s_lshr_b32 s22, s22, 6
    s_lshl_b32 s24, s22, 11
    s_add_u32 s25, s23, s24
    v_lshl_add_u32 v{ZO}, v{L}, 4, s25
    s_lshl_b32 s24, s22, 10
    v_lshl_add_u32 v{RO}, v{L}, 3, s24
    s_lshl_b32 s24, s22, 12
    s_add_u32 s25, s23, s24
    v_lshl_add_u32 v{WO}, v{L}, 4, s25
    s_movk_i32 s26, 0x2000
    s_movk_i32 s27, 0x1000
    s_mov_b32 s14, {SZ_Z}
    s_mov_b32 s15, 0x20000
    s_mov_b32 s18, {SZ_RS}
    s_mov_b32 s19, 0x20000
    s_waitcnt lgkmcnt(0)
    s_mov_b32 s12, s4
    s_mov_b32 s13, s5
    s_add_u32 s16, s4, {WS_RS}
    s_addc_u32 s17, s5, 0""")
    for q1 in range(2):
        for ab in range(2):
            k(f"buffer_load_dwordx4 {vr(ZL+8*ab+4*q1,4)}, v{ZO}, s[12:15], {'s26' if ab else '0'} offen offset:{1024*q1}")
    for ab in range(2):
        for q1 in range(2):
            k(f"buffer_load_dwordx2 {vr(RS+4*ab+2*q1,2)}, v{RO}, s[16:19], {'s27' if ab else '0'} offen offset:{512*q1}")
    srd(k, 8, 4, WS_WT, SZ_WT)
    for g in range(4):
        k(f"buffer_load_dwordx4 {vr(WL+4*g,4)}, v{WO}, s[8:11], 0 offen offset:{1024*g}")
    k.stamp(1)
    k(f"""v_lshlrev_b32 v{LW}, 4, v0
    v_lshl_add_u32 v{LR}, v{L}, 4, s24""")
    fi, hf, f32, b32, f1k, b1k, fs, one, ta = T0+0, T0+1, T0+2, T0+3, T0+4, T0+5, T0+6, T0+7, T0+8
    k(f"""v_cvt_f32_u32 v{fs}, v5
    v_cvt_f32_u32 v{fi}, v3
    v_lshrrev_b32 v{hf}, 5, v{L}
    v_cvt_f32_u32 v{hf}, v{hf}
    v_mul_f32 v{fs}, {fhex(1/2048)}, v{fs}
    v_mov_b32 v{one}, {fhex(1/64)}
    v_mul_f32 v{hf}, 4.0, v{hf}
    v_mul_f32 v{f32}, {fhex(1/32)}, v{fi}
    v_mul_f32 v{f1k}, {fhex(1/1024)}, v{fi}
    v_mul_f32 v{b32}, v{f32}, v{hf}
    v_mul_f32 v{b1k}, v{f1k}, v{hf}""")
    trig_table(k, one, fs, [0, 1, 2, 3], [OC+i for i in range(4)], [OS+i for i in range(4)], ta)
    muls16 = [breg(r) for r in range(16)]
    trig_table(k, f32, b32, muls16, [TWC+i for i in range(16)], [TWS+i for i in range(16)], ta)
    for i in range(16):
        k(f"v_cvt_pk_bf16_f32 v{MA+i}, v{TWC+i}, v{TWS+i}")
        k(f"v_cvt_pk_bf16_f32 v{MBm+i}, -v{TWS+i}, v{TWC+i}")
    k(f"v_mov_b32 v{WR}, v{f1k}\nv_mov_b32 v{WR+1}, v{b1k}")
    k.stamp(2)
    zf = lambda ab, i, part: ZF + 16*ab + 8*i + 4*part
    for q in range(4):
        if q % 2 == 0: k(f"s_waitcnt vmcnt({10 - q})")
        for ab in range(2):
            for i in range(2):
                z = ZL + 8*ab + 2*q + i
                k(f"v_lshlrev_b32 v{zf(ab,i,0)+q}, 16, v{z}\nv_and_b32 v{zf(ab,i,1)+q}, 0xffff0000, v{z}")
    k("s_waitcnt vmcnt(4)")
    k.stamp(3)
    EV, OD = DR[0], DI[0]
    neg = "neg_lo:[1,0,0] neg_hi:[1,0,0]"
    for i in range(2):
        for part in range(2):
            for qq in range(0, 4, 2):
                o = 8*i + 4*part + qq
                k(f"v_pk_mul_f32 {vr(OD+o,2)}, {vr(zf(0,i,part)+qq,2)}, {vr(RS+qq,2)}")
        for part in range(2):
            for qq in range(0, 4, 2):
                o = 8*i + 4*part + qq
                k(f"v_pk_fma_f32 {vr(EV+o,2)}, {vr(zf(1,i,part)+qq,2)}, {vr(RS+4+qq,2)}, {vr(OD+o,2)}")
                k(f"v_pk_fma_f32 {vr(OD+o,2)}, {vr(zf(1,i,part)+qq,2)}, {vr(RS+4+qq,2)}, {vr(OD+o,2)} {neg}")
        for q in range(4):
            k(f"v_cvt_pk_bf16_f32 v{PK+8*i+q}, v{EV+8*i+q}, v{EV+8*i+4+q}")
        k(f"ds_write_b128 v{LW}, {vr(PK+8*i,4)} offset:{(2*i)*4096}")
        cmul_pack(k, OD+8*i, OD+8*i+4, OC, OS, PK+8*i+4, T0, 'conj', range(2))
        k(f"ds_write_b128 v{LW}, {vr(PK+8*i+4,4)} offset:{(2*i+1)*4096}")
    k("s_waitcnt lgkmcnt(0)\ns_barrier")
    k.stamp(4)
    U = ZL
    for g in range(4):
        k(f"ds_read_b128 {vr(U+4*g,4)}, v{LR} offset:{1024*g}")
    def mm(s, data, g, data_is_A, swap):
        for (acc, M) in (((DR[s], MA), (DI[s], MBm)) if not swap else ((DI[s], MA), (DR[s], MBm))):
            c = "0" if g == 0 else vr(acc, 16)
            a, b = (vr(data+4*g,4), vr(M+4*g,4)) if data_is_A else (vr(M+4*g,4), vr(data+4*g,4))
            k(f"{M32} {vr(acc,16)}, {a}, {b}, {c}")
    tw = Kernel("tmp")
    trig_table(tw, WR, WR+1, muls16, [TWC+i for i in range(16)], [TWS+i for i in range(16)], T0+8)
    twl = [i.text for i in tw.ins]
    per = len(twl) // 4
    for x in twl[:per//2]: k(x)
    pos = per//2
    for g in range(4):
        k(f"s_waitcnt lgkmcnt({3-g})")
        mm(0, U, g, True, False)
        nxt = len(twl) if g == 3 else pos + per
        for x in twl[pos:nxt]: k(x)
        pos = nxt
    k("s_waitcnt vmcnt(0)")
    for r in range(16):
        k(f"v_lshlrev_b32 v{WR+r}, 16, v{WL+r}\nv_and_b32 v{WI+r}, 0xffff0000, v{WL+r}")
    OP = WL
    for g in range(4):
        cmul_pack(k, DR[0], DI[0], TWC, TWS, OP, T0, 'conj', range(2*g, 2*g+2)); mm(1, OP, g, False, False)
    for g in range(4):
        cmul_pack(k, DR[1], DI[1], WR, WI, OP, T0, 'pos', range(2*g, 2*g+2), swap=True); mm(0, OP, g, True, True)
    for g in range(4):
        cmul_pack(k, DR[0], DI[0], TWC, TWS, OP, T0, 'pos', range(2*g, 2*g+2), swap=True); mm(1, OP, g, False, True)
    k.stamp(5)
    k(f"""v_add_u32 v{LR}, s24, v{LR}
    s_mov_b32 s36, {fhex(1/2048)}
    s_mov_b32 s37, {fhex(1/2048)}
    s_cmp_eq_u32 s{sid}, 0
    s_cselect_b32 s38, 0, s36
    s_mov_b32 s39, s38""")
    for part, acc in ((1, DI[1]), (0, DR[1])):
        for g in range(4):
            k(f"ds_write_b128 v{LR}, {vr(acc+4*g,4)} offset:{16384 + part*4096 + g*1024}")
    k("s_waitcnt lgkmcnt(0)\ns_barrier")
    O = WR
    for w in (1, 3, 0, 2):
        for part in range(2):
            k(f"ds_read_b128 {vr(O+8*w+4*part,4)}, v{LW} offset:{16384 + w*8192 + part*4096}")
    for i in range(2):
        Qr, Qi = O+16*i+8, O+16*i+12
        k(f"s_waitcnt lgkmcnt({6 - 2*i})")
        Tr, Ti = DR[0] + 8*i, DR[0] + 8*i + 4
        for qq in (0, 2):
            k(f"v_pk_mul_f32 {vr(Tr+qq,2)}, {vr(Qr+qq,2)}, {vr(OC+qq,2)}")
            k(f"v_pk_mul_f32 {vr(Ti+qq,2)}, {vr(Qi+qq,2)}, {vr(OC+qq,2)}")
        for qq in (0, 2):
            k(f"v_pk_fma_f32 {vr(Tr+qq,2)}, {vr(Qi+qq,2)}, {vr(OS+qq,2)}, {vr(Tr+qq,2)} {neg}")
            k(f"v_pk_fma_f32 {vr(Ti+qq,2)}, {vr(Qr+qq,2)}, {vr(OS+qq,2)}, {vr(Ti+qq,2)}")
    for i in range(2):
        Pr, Pi = O+16*i, O+16*i+4
        Tr, Ti = DR[0] + 8*i, DR[0] + 8*i + 4
        k(f"s_waitcnt lgkmcnt({2 - 2*i})")
        for part, (P, T) in enumerate(((Pr, Tr), (Pi, Ti))):
            sc = "s[38:39]" if (i == 0 and part == 1) else "s[36:37]"
            for qq in (0, 2):
                for ab in range(2):
                    z = zf(ab, i, part) + qq
                    k(f"v_pk_fma_f32 {vr(z,2)}, {vr(P+qq,2)}, {sc}, {vr(z,2)}")
            for qq in (0, 2):
                for ab in range(2):
                    z = zf(ab, i, part) + qq
                    k(f"v_pk_fma_f32 {vr(z,2)}, {vr(T+qq,2)}, {sc}, {vr(z,2)} " + (neg if ab else ''))
        for ab in range(2):
            for q in range(4):
                k(f"v_cvt_pk_bf16_f32 v{ZL+8*ab+2*q+i}, v{zf(ab,i,0)+q}, v{zf(ab,i,1)+q}")
                if i == 1 and q % 2 == 1:
                    k(f"buffer_store_dwordx4 {vr(ZL+8*ab+2*q-2,4)}, v{ZO}, s[12:15], {'s26' if ab else '0'} offen offset:{512*(q-1)} {ST_FL}")
    k.stamp(6)
    k.endpgm()
```

```python
from asm import *
import math
A_X, A_WR, A_WI, A_W1, A_B1, A_W2, A_B2, A_OUT, A_DBG, A_WS = 0, 8, 16, 32, 40, 48, 56, 64, 72, 80
MB = 1 << 20
WS_Z, SZ_Z = 0, 4*MB
WS_RS, SZ_RS = 4*MB, 16384
WS_WT, SZ_WT = 5*MB, 4*MB
WS_W1, SZ_W1 = 9*MB, 3584*2048
WS_W2, SZ_W2 = 16*MB, 3584*2048
WS_H,  SZ_H  = 24*MB, 2048*3584*2
WS_P,  SZ_P  = 40*MB, 8*MB
R2 = math.sqrt(0.5)

def srd(k, d, base, off, size):
    if off:
        k(f"s_add_u32 s{d}, s{base}, {hex(off)}\ns_addc_u32 s{d+1}, s{base+1}, 0")
    else:
        k(f"s_mov_b32 s{d}, s{base}\ns_mov_b32 s{d+1}, s{base+1}")
    k(f"s_mov_b32 s{d+2}, {hex(size)}\ns_mov_b32 s{d+3}, 0x20000")

def angle(k, dst, fl, mul, base):
    if mul == 0: k(f"v_mov_b32 v{dst}, v{base}")
    else: k(f"v_fmamk_f32 v{dst}, v{fl}, {fhex(float(mul))}, v{base}")

def trig_table(k, fl, base, muls, cdst, sdst, tmp):
    n = len(muls)
    angle(k, tmp, fl, muls[0], base)
    for i in range(n):
        t = tmp + (i & 1)
        if i + 1 < n: angle(k, tmp + ((i+1) & 1), fl, muls[i+1], base)
        k(f"v_cos_f32 v{cdst[i]}, v{t}\nv_sin_f32 v{sdst[i]}, v{t}")

def breg(r):
    return 8*(r >> 2) + (r & 3)

def cmul_pack(k, yr, yi, c, s, out, tmp, mode, rng=range(8), swap=False):
    L = list(rng)
    for idx in range(0, len(L), 2):
        grp = L[idx:idx+2]
        T = {p: tmp + 4*j for j, p in enumerate(grp)}
        for p in grp:
            r = 2*p
            k(f"v_pk_mul_f32 {vr(T[p],2)}, {vr(yr+r,2)}, {vr(c+r,2)}")
            k(f"v_pk_mul_f32 {vr(T[p]+2,2)}, {vr(yi+r,2)}, {vr(c+r,2)}")
        for p in grp:
            r = 2*p
            neg = "neg_lo:[1,0,0] neg_hi:[1,0,0]"
            k(f"v_pk_fma_f32 {vr(T[p],2)}, {vr(yi+r,2)}, {vr(s+r,2)}, {vr(T[p],2)} " + (neg if mode == 'pos' else ''))
            k(f"v_pk_fma_f32 {vr(T[p]+2,2)}, {vr(yr+r,2)}, {vr(s+r,2)}, {vr(T[p]+2,2)} " + (neg if mode == 'conj' else ''))
        for p in grp:
            r = 2*p
            for j in range(2):
                a, b = T[p]+j, T[p]+2+j
                if swap: a, b = b, a
                k(f"v_cvt_pk_bf16_f32 v{out+r+j}, v{a}, v{b}")

def wave_sum(k, regs):
    for m in ("row_shr:1 row_mask:0xf", "row_shr:2 row_mask:0xf", "row_shr:4 row_mask:0xf", "row_shr:8 row_mask:0xf",
              "row_bcast:15 row_mask:0xa", "row_bcast:31 row_mask:0xc"):
        for r in regs:
            k(f"v_add_f32_dpp v{r}, v{r}, v{r} {m} bank_mask:0xf")

M32 = "v_mfma_f32_32x32x16_bf16"
M16 = "v_mfma_f32_16x16x32_bf16"

def code_prefetch(k, target, nbytes, vtmp, lane, sp=50, back=False, wave_sgpr=None):
    lab = k.lab('pc')
    k(f"s_getpc_b64 s[{sp}:{sp+1}]\n{lab}:")
    if back:
        k(f"s_sub_u32 s{sp}, s{sp}, {lab}-{target}\ns_subb_u32 s{sp+1}, s{sp+1}, 0")
    else:
        k(f"s_add_u32 s{sp}, s{sp}, {target}-{lab}\ns_addc_u32 s{sp+1}, s{sp+1}, 0")
    k(f"v_lshlrev_b32 v{vtmp}, 7, v{lane}")
    n = -(-nbytes // 8192)
    for i in range(n):
        if i: k(f"v_add_u32 v{vtmp}, 0x2000, v{vtmp}")
        rem = nbytes - i*8192
        if rem < 8192:
            k(f"v_min_u32 v{vtmp}, {(nbytes-4) & ~3}, v{vtmp}")
        k(f"global_load_dword v{vtmp+1}, v{vtmp}, s[{sp}:{sp+1}]")

def pc_base(k, sp, target, back):
    lab = k.lab('pc')
    k(f"s_getpc_b64 s[{sp}:{sp+1}]\n{lab}:")
    if back: k(f"s_sub_u32 s{sp}, s{sp}, {lab}-{target}\ns_subb_u32 s{sp+1}, s{sp+1}, 0")
    else: k(f"s_add_u32 s{sp}, s{sp}, {target}-{lab}\ns_addc_u32 s{sp+1}, s{sp+1}, 0")

def tab_dma(k, kind, back, ldsbase, swave, vt, sp=48):
    pc_base(k, sp, f"tab_{kind}", back)
    k(f"""s_lshl_b32 s{sp+2}, s{swave}, 12
    v_and_b32 v{vt}, 63, v0
    v_lshl_add_u32 v{vt}, v{vt}, 4, s{sp+2}
    s_add_u32 m0, s{sp+2}, {ldsbase}""")
    for j in range(4): k(f"global_load_lds_dwordx4 v{vt}, s[{sp}:{sp+1}] offset:{1024*j}")

def tab_read(k, ldsbase, vl16, order=None):
    for g in (order or range(16)):
        k(f"ds_read_b128 {vr(12+4*g,4)}, v{vl16} offset:{ldsbase + 1024*g}")

def code_prefetch1(k, target, nbytes, back, vtmp, lane, schunk, sp=50):
    lab = k.lab('pfx')
    k(f"s_cmp_ge_u32 s{schunk}, {-(-nbytes // 8192)}\ns_cbranch_scc1 {lab}")
    pc_base(k, sp, target, back)
    k(f"""s_lshl_b32 s{sp+2}, s{schunk}, 13
    v_lshl_add_u32 v{vtmp}, v{lane}, 7, s{sp+2}
    v_min_u32 v{vtmp}, {(nbytes-4) & ~3}, v{vtmp}
    global_load_dword v{vtmp+1}, v{vtmp}, s[{sp}:{sp+1}]
    {lab}:""")
WS_FL, SZ_FL = 4*MB + 65536, 32768
```

```python
from common import *

def interleave(k, mf, fill, frac=1.0):
    n = max(1, int(len(mf) * frac))
    done = 0
    for i, m in enumerate(mf):
        k(m)
        want = min(len(fill), -(-len(fill) * (i + 1) // n))
        while done < want:
            k(fill[done]); done += 1
    while done < len(fill):
        k(fill[done]); done += 1

G1_STAGE = 28672 + 16*1088
G1_SS = 3 * G1_STAGE
G1_LDS = G1_SS + 2048
ST_FL = "sc0 sc1"

def gen_g1(name, opt={}):
    k = Kernel(name)
    NST = 16
    k(f"""s_mov_b32 s35, 0
    L_g1_body:
    s_cmp_ge_u32 s2, 256
    s_cbranch_scc1 L_g1_end""")
    k.startstamp()
    k(f"""s_load_dwordx2 s[4:5], s[0:1], {A_WS}
    s_load_dwordx2 s[6:7], s[0:1], {A_B1}
    s_load_dwordx2 s[32:33], s[0:1], {A_W2}
    v_readfirstlane_b32 s22, v0
    s_and_b32 s20, s2, 1
    s_bfe_u32 s21, s2, 0x30003
    s_lshl3_add_u32 s20, s20, s21
    s_bfe_u32 s21, s2, 0x20001
    s_lshr_b32 s23, s2, 6
    s_lshl2_add_u32 s21, s21, s23
    s_lshr_b32 s22, s22, 6
    s_cmp_lt_u32 s22, 4
    s_cbranch_scc1 L_g1_mma""")
    L, VA, VB, RS_, SS, D = 1, 2, 4, 8, 10, 12
    k(f"""s_sub_u32 s22, s22, 4
    v_and_b32 v{L}, 63, v0
    s_mul_i32 s25, s21, {16*28672}
    s_mul_i32 s26, s22, 7168
    s_add_u32 s25, s25, s26
    v_lshl_add_u32 v{VA}, v{L}, 4, s25
    s_lshl_b32 s25, s22, 16
    s_lshl_b32 s27, s20, 10
    s_add_u32 s25, s25, s27
    v_lshl_add_u32 v{VB}, v{L}, 4, s25
    v_add_u32 v{VA+1}, 4096, v{VA}
    v_add_u32 v{VB+1}, 0x4000, v{VB}
    v_add_u32 v{VB+2}, 0x8000, v{VB}
    v_add_u32 v{VB+3}, 0xc000, v{VB}
    s_mul_i32 s27, s22, {4*1088}
    s_add_u32 s27, s27, 28672
    s_mov_b32 s10, {SZ_W1}
    s_mov_b32 s11, 0x20000
    s_mov_b32 s14, {SZ_Z}
    s_mov_b32 s15, 0x20000
    s_waitcnt lgkmcnt(0)
    s_add_u32 s8, s4, {WS_W1}
    s_addc_u32 s9, s5, 0
    s_mov_b32 s12, s4
    s_mov_b32 s13, s5""")
    def dma(st, mid=None):
        ring = (st % 3) * G1_STAGE
        k(f"s_mov_b32 s30, {st*28672}\ns_mov_b32 s31, {st*262144}")
        for j in range(4):
            k(f"s_add_u32 m0, s27, {ring + j*1088}")
            k(f"buffer_load_dwordx4 v{VB+j}, s[12:15], s31 offen lds")
        if mid: mid()
        for j in range(7):
            if j % 4 == 0: k(f"s_add_u32 m0, s26, {ring + (j//4)*4096}")
            k(f"buffer_load_dwordx4 v{VA+j//4}, s[8:11], s30 offen offset:{(j%4)*1024} lds")
    dma(0); dma(1)
    if opt.get('lprio'): k(f"s_setprio {opt['lprio']}")
    k(f"""v_lshl_add_u32 v{RS_}, v{L}, 4, s27
    v_add_u32 v{RS_+1}, {2*G1_STAGE}, v{RS_}
    v_mov_b32 v{SS}, 0
    v_mov_b32 v{SS+1}, 0
    v_mov_b32 v36, 0
    v_mov_b32 v37, 0
    s_mov_b32 s34, 0xffff0000""")
    CS, CD, CB = 28, 56, 64
    srd(k, 16, 32, 0, 3584*2048)
    srd(k, 40, 4, WS_W2, SZ_W2)
    k(f"""s_mul_i32 s28, s2, 28672
    s_mul_i32 s29, s22, 7168
    s_add_u32 s28, s28, s29
    v_lshl_add_u32 v{CS}, v{L}, 4, s28
    v_add_u32 v{CS+1}, 4096, v{CS}
    s_mov_b32 s29, 917504
    v_lshrrev_b32 v30, 4, v{L}
    v_mul_lo_u32 v30, v30, s29
    v_and_b32 v31, 15, v{L}""")
    TH = 92
    srd(k, 44, 4, 0, 48*MB)
    k(f"""s_mul_i32 s29, s20, 112
    s_mul_i32 s30, s21, 7
    s_add_u32 s29, s29, s30
    s_lshl_b32 s29, s29, 13
    s_mul_i32 s30, s22, 14336
    s_add_u32 s29, s29, s30
    s_add_u32 s29, s29, {WS_H}
    v_min_u32 v{TH+1}, 55, v{L}
    v_lshl_add_u32 v{TH}, v{TH+1}, 7, s29
    s_add_u32 s29, s28, {WS_W2}
    v_lshl_add_u32 v{TH+2}, v{TH+1}, 7, s29
    v_add_u32 v{TH+1}, 7168, v{TH}
    s_lshl_b32 s29, s2, 15
    s_lshl_b32 s30, s22, 13
    s_add_u32 s29, s29, s30
    s_add_u32 s29, s29, {WS_P}
    v_lshl_add_u32 v{TH+3}, v{L}, 7, s29""")
    PW = {}
    for i in range(NST):
        k(f"s_waitcnt vmcnt({(11 if i+1 < NST else 0) + PW.get(i-1, 0) + PW.get(i-2, 0)})\ns_barrier")
        ring = i % 3
        for j in range(4):
            k(f"ds_read_b128 {vr(D+4*j,4)}, v{RS_+(ring>>1)} offset:{(ring&1)*G1_STAGE + j*1088}")
        def stats():
            for j in range(4):
                k(f"s_waitcnt lgkmcnt({3-j})")
                if opt.get('stat', 'm4') == 'dot':
                    for q in (0, 2, 1, 3):
                        k(f"v_dot2_f32_bf16 v{SS+(q>>1)}, v{D+4*j+q}, v{D+4*j+q}, v{SS+(q>>1)}")
                else:
                    for q in range(2):
                        A4 = 40 + 8*(j & 1) + 4*q
                        k(f"v_mfma_f32_4x4x4_16b_bf16 {vr(A4,4)}, {vr(D+4*j+2*q,2)}, {vr(D+4*j+2*q,2)}, {'0' if (i == 0 and j < 2) else vr(A4,4)}")
        if i + 2 < NST: dma(i+2)
        tl = opt.get('touch', [])
        if i in tl:
            k(f"buffer_load_dword v{TH+4}, v{TH+tl.index(i)}, s[44:47], 0 offen")
            PW[i] = 1
        if i == NST - 1:
            k("s_cmp_eq_u32 s35, 0\ns_cbranch_scc1 L_g1_nocp1")
            for j in range(7):
                k(f"buffer_load_dwordx4 {vr(CB+4*j,4)}, v{CS+j//4}, s[16:19], 0 offen offset:{(j%4)*1024} nt")
            k("L_g1_nocp1:")
        stats()
    if opt.get('stat', 'm4') == 'm4':
        k(f"v_and_b32 v32, 3, v{L}")
        for r in range(8): k(f"v_add_f32 v{40+r}, v{40+r}, v{48+r}")
        for r in range(4):
            k(f"v_cmp_eq_u32 vcc, {r}, v32")
            k(f"v_cndmask_b32 v{SS}, v{SS}, v{40+r}, vcc\nv_cndmask_b32 v{SS+1}, v{SS+1}, v{44+r}, vcc")
    k(f"""v_add_f32 v{SS}, v{SS}, v36
    v_add_f32 v{SS+1}, v{SS+1}, v37
    s_lshl_b32 s25, s22, 9
    s_add_u32 s25, s25, {G1_SS}
    v_lshl_add_u32 v{RS_}, v{L}, 3, s25
    ds_write_b64 v{RS_}, {vr(SS,2)}
    s_waitcnt lgkmcnt(0)
    s_barrier""")
    k("s_cmp_eq_u32 s35, 0\ns_cbranch_scc1 L_g1_nocp2")
    for j in range(7):
        k(f"""s_add_u32 s29, s28, {1024*j}
        s_lshr_b32 s30, s29, 11
        s_bfe_u32 s31, s29, 0x1000a
        s_mul_i32 s31, s31, {4*917504}
        s_lshl_b32 s29, s30, 8
        s_add_u32 s31, s31, s29
        s_and_b32 s30, s30, 7
        s_lshl_b32 s30, s30, 1
        v_xor_b32 v{CD+j}, s30, v31
        v_lshl_add_u32 v{CD+j}, v{CD+j}, 4, v30
        v_add_u32 v{CD+j}, s31, v{CD+j}""")
    for j in range(7):
        k(f"s_waitcnt vmcnt(6)\nbuffer_store_dwordx4 {vr(CB+4*j,4)}, v{CD+j}, s[40:43], 0 offen {ST_FL}")
    k("L_g1_nocp2:")
    k("s_lshr_b32 s26, s2, 3\ns_lshl_b32 s27, s22, 5\ns_add_u32 s26, s26, s27")
    for (lab, nb, back) in opt.get('next', []):
        code_prefetch1(k, lab, nb, back, D, L, 26)
    k("s_endpgm")
    ACC = 0
    FA = [112, 156]; FB = [140, 184]
    SS = 200; RA = 204; RB = 210
    BL = 214; L = 228; VS = 229; T = 230; VH = 238; VH6 = 239; SX = 240
    acc = lambda t, st: ACC + 16*t + 4*st
    k("L_g1_mma:")
    if opt.get('mprio'): k(f"s_setprio {opt['mprio']}")
    k(f"""v_and_b32 v{L}, 63, v0
    s_and_b32 s23, s22, 1
    s_lshr_b32 s24, s22, 1
    s_mul_i32 s28, s21, 448
    s_lshl_b32 s29, s23, 8
    s_add_u32 s29, s29, s28
    v_lshrrev_b32 v{T}, 4, v{L}
    v_lshl_add_u32 v{T+1}, v{T}, 3, s29
    s_lshl_b32 s29, s23, 5
    s_add_u32 s29, s29, s28
    v_lshl_add_u32 v{T+2}, v{T}, 3, s29
    v_and_b32 v{T+3}, 15, v{L}
    v_and_b32 v{T+4}, 7, v{L}
    v_xor_b32 v{T+4}, v{T+4}, v{T}
    v_lshlrev_b32 v{T+4}, 4, v{T+4}
    v_lshl_add_u32 v{T+4}, v{T+3}, 7, v{T+4}
    s_mul_i32 s28, s23, {7*2048}
    v_add_u32 v{RA}, s28, v{T+4}
    v_xor_b32 v{RA+1}, 64, v{RA}
    v_mul_u32_u24 v{T+4}, {2*1088}, v{T}
    v_lshl_add_u32 v{T+4}, v{T+3}, 3, v{T+4}
    s_lshl_b32 s28, s24, 9
    s_add_u32 s28, s28, 28672
    v_add_u32 v{RB}, s28, v{T+4}
    s_lshl_b32 s28, s24, 8
    s_add_u32 s28, s28, {G1_SS}
    v_lshl_add_u32 v{VS}, v{T+3}, 2, s28""")
    for r in (1, 2):
        k(f"v_add_u32 v{RA+2*r}, {r*G1_STAGE}, v{RA}\nv_add_u32 v{RA+2*r+1}, {r*G1_STAGE}, v{RA+1}\nv_add_u32 v{RB+r}, {r*G1_STAGE}, v{RB}")
    k(f"""s_mul_i32 s28, s20, 112
    s_mul_i32 s29, s21, 7
    s_add_u32 s28, s28, s29
    s_lshl_b32 s28, s28, 13
    s_lshl_b32 s29, s24, 12
    s_add_u32 s28, s28, s29
    s_lshl_b32 s29, s23, 15
    s_add_u32 s29, s29, s28
    v_lshl_add_u32 v{VH}, v{L}, 4, s29
    s_lshl_b32 s29, s23, 10
    s_add_u32 s29, s29, s28
    s_add_u32 s29, s29, {3*8192}
    v_lshl_add_u32 v{VH6}, v{L}, 4, s29
    s_waitcnt lgkmcnt(0)""")
    srd(k, 16, 6, 0, 7168)
    srd(k, 12, 4, WS_H, SZ_H)
    for (lab, nb, back) in opt.get('self', []):
        lab2 = k.lab('nopf')
        k(f"s_cmp_ge_u32 s2, 16\ns_cbranch_scc1 {lab2}")
        code_prefetch(k, lab, nb, T+4, L, back=back)
        k(f"{lab2}:")
    bias_loads = [f"buffer_load_dwordx2 {vr(BL+2*t,2)}, v{T+1}, s[16:19], 0 offen offset:{32*t}" for t in range(6)]
    bias_loads.append(f"buffer_load_dwordx2 {vr(BL+12,2)}, v{T+2}, s[16:19], 0 offen offset:192")
    def reads(st, ksub, s):
        ring = st % 3
        a = [f"ds_read_b128 {vr(FA[s]+4*t,4)}, v{RA+2*ring+ksub} offset:{t*2048}" for t in range(7)]
        b = [f"ds_read_b64 {vr(FB[s]+4*j+2*hi,2)}, v{RB+ring} offset:{(8*ksub+hi)*1088 + j*128}" for j in range(4) for hi in range(2)]
        return [a[0]] + b + a[1:]
    def mfmas(s, first=False):
        return [f"{M16} {vr(acc(t,st),4)}, {vr(FA[s]+4*t,4)}, {vr(FB[s]+4*st,4)}, {'0' if first else vr(acc(t,st),4)}" for t in range(7) for st in range(4)]
    k.stamp(1)
    fr = opt.get('frac', 0.6)
    for i in range(NST + 1):
        k("s_waitcnt lgkmcnt(0)\ns_barrier")
        if i == 0: k.stamp(2); k.cstamp(8)
        if i < NST:
            fill = reads(i, 0, 0)
            if i == 12: fill = fill + bias_loads
        else:
            fill = [f"ds_read2st64_b32 {vr(SX+4*st+2*j,2)}, v{VS} offset0:{4*j} offset1:{4*j+2}" if False else
                    f"ds_read_b32 v{SX+4*st+j}, v{VS} offset:{64*st + 512*j}" for st in range(4) for j in range(4)]
        if i > 0: interleave(k, mfmas(1), fill, fr)
        else:
            for x in fill: k(x)
        if i < NST:
            if i == 0:
                m = mfmas(0, True); rd = reads(i, 1, 1)
                k("s_waitcnt lgkmcnt(0)")
                interleave(k, m, rd, fr)
            else:
                k("s_waitcnt lgkmcnt(0)")
                interleave(k, mfmas(0), reads(i, 1, 1), fr)
    k.stamp(3); k.cstamp(9)
    BF = FA[0]; RSV = SS
    k("s_waitcnt vmcnt(0) lgkmcnt(0)")
    for st in range(4): k(f"v_add_f32 v{SX+4*st}, v{SX+4*st}, v{SX+4*st+1}")
    for st in range(4): k(f"v_add_f32 v{SX+4*st+2}, v{SX+4*st+2}, v{SX+4*st+3}")
    k(f"v_mov_b32 v{T}, {fhex(1e-5)}")
    for st in range(4): k(f"v_add_f32 v{SS+st}, v{SX+4*st}, v{SX+4*st+2}")
    for st in range(4): k(f"v_fmamk_f32 v{SS+st}, v{SS+st}, {fhex(2/(1024*1024))}, v{T}")
    for st in range(4): k(f"v_rsq_f32 v{SS+st}, v{SS+st}")
    for t in range(7):
        for j in range(2):
            k(f"v_lshlrev_b32 v{BF+4*t+2*j}, 16, v{BL+2*t+j}\nv_and_b32 v{BF+4*t+2*j+1}, 0xffff0000, v{BL+2*t+j}")
    c2 = 2*math.sqrt(2/math.pi)*math.log2(math.e); c1 = c2*0.044715
    al = c1 ** (1/3); cp = c2 / al
    k(f"s_mov_b32 s36, {fhex(al)}\ns_mov_b32 s37, {fhex(al)}\ns_mov_b32 s38, {fhex(cp)}\ns_mov_b32 s39, {fhex(cp)}")
    for st in range(4): k(f"v_mul_f32 v{SS+st}, {fhex(2/1024*al)}, v{SS+st}")
    for j in range(14): k(f"v_pk_mul_f32 {vr(BF+2*j,2)}, {vr(BF+2*j,2)}, s[36:37]")
    OUT = FA[1]; TMP = FB[0]
    def gelu_group(items):
        n = len(items)
        for j, (a, b, st, o) in enumerate(items):
            sel = "op_sel_hi:[1,0,1]" if st % 2 == 0 else "op_sel:[0,1,0] op_sel_hi:[1,1,1]"
            k(f"v_pk_fma_f32 {vr(a,2)}, {vr(a,2)}, {vr(RSV+(st&2),2)}, {vr(b,2)} {sel}")
        for j, (a, b, st, o) in enumerate(items): k(f"v_pk_fma_f32 {vr(TMP+2*j,2)}, {vr(a,2)}, {vr(a,2)}, s[38:39]")
        for j, (a, b, st, o) in enumerate(items): k(f"v_pk_mul_f32 {vr(TMP+2*j,2)}, {vr(TMP+2*j,2)}, {vr(a,2)}")
        for j in range(2*n): k(f"v_exp_f32 v{TMP+j}, -v{TMP+j}")
        for j in range(n): k(f"v_pk_fma_f32 {vr(TMP+2*j,2)}, {vr(TMP+2*j,2)}, s[36:37], s[36:37]")
        for j in range(2*n): k(f"v_rcp_f32 v{TMP+j}, v{TMP+j}")
        for j, (a, b, st, o) in enumerate(items): k(f"v_pk_mul_f32 {vr(TMP+2*j,2)}, {vr(TMP+2*j,2)}, {vr(a,2)}")
        for j, (a, b, st, o) in enumerate(items): k(f"v_cvt_pk_bf16_f32 v{o}, v{TMP+2*j}, v{TMP+2*j+1}")
    cnt = 0
    for st2 in range(2):
        o = OUT + 4*(cnt % 6); cnt += 1
        items = [(acc(6, 2*st2+tt)+2*j, BF+24+2*j, 2*st2+tt, o+2*tt+j) for tt in range(2) for j in range(2)]
        gelu_group(items)
        k(f"buffer_store_dwordx4 {vr(o,4)}, v{VH6}, s[12:15], 0 offen offset:{st2*2048} {ST_FL}")
    for pr in range(3):
        k(f"s_mov_b32 s30, {pr*8192}")
        for st in range(4):
            o = OUT + 4*(cnt % 6); cnt += 1
            items = [(acc(2*pr+tt, st)+2*j, BF+4*(2*pr+tt)+2*j, st, o+2*tt+j) for tt in range(2) for j in range(2)]
            gelu_group(items)
            k(f"buffer_store_dwordx4 {vr(o,4)}, v{VH}, s[12:15], s30 offen offset:{st*1024} {ST_FL}")
    k.stamp(4)
    k.endpgm()
    k("L_g1_end:\ns_endpgm")
    return k.finalize()

G2_NS = 4
G2_LDS = G2_NS * 32768

def gen_g2(name, opt={}):
    k = Kernel(name)
    NST = 28
    k(f"""s_cmp_ge_u32 s2, 256
    s_cbranch_scc1 L_g2_end""")
    k.startstamp()
    k(f"""s_load_dwordx2 s[4:5], s[0:1], {A_WS}
    s_load_dwordx4 s[8:11], s[0:1], {A_W2}
    v_readfirstlane_b32 s22, v0
    s_and_b32 s20, s2, 3
    s_bfe_u32 s21, s2, 0x20003
    s_lshl2_add_u32 s20, s20, s21
    s_lshr_b32 s21, s2, 5
    s_bfe_u32 s25, s2, 0x10002
    s_lshr_b32 s22, s22, 6
    s_cmp_lt_u32 s22, 4
    s_cbranch_scc1 L_g2_mma""")
    L, VB, VA, T = 1, 2, 4, 8
    k(f"""s_sub_u32 s22, s22, 4
    v_and_b32 v{L}, 63, v0
    s_mul_i32 s26, s25, 56
    s_lshl_b32 s28, s22, 12
    s_mul_i32 s27, s20, 112
    s_add_u32 s27, s27, s26
    s_lshl_b32 s27, s27, 13
    s_add_u32 s27, s27, s28
    v_lshl_add_u32 v{VB}, v{L}, 4, s27
    s_mul_i32 s27, s25, {1792*256}
    s_mul_i32 s26, s21, 917504
    s_add_u32 s27, s27, s26
    s_add_u32 s27, s27, s28
    v_lshl_add_u32 v{VA}, v{L}, 4, s27
    s_mov_b32 s14, {SZ_H}
    s_mov_b32 s15, 0x20000
    s_waitcnt lgkmcnt(0)
    s_mov_b32 s10, {SZ_W2}
    s_mov_b32 s11, 0x20000
    s_add_u32 s8, s4, {WS_W2}
    s_addc_u32 s9, s5, 0
    s_add_u32 s12, s4, {WS_H}
    s_addc_u32 s13, s5, 0""")
    def dma(st):
        ring = (st % G2_NS) * 32768
        k(f"s_add_u32 m0, s28, {ring+16384}\ns_mov_b32 s30, {st*16384}")
        for j in range(4): k(f"buffer_load_dwordx4 v{VB}, s[12:15], s30 offen offset:{j*1024} lds")
        k(f"s_add_u32 m0, s28, {ring}")
        for j in range(4): k(f"buffer_load_dwordx4 v{VA}, s[8:11], s30 offen offset:{j*1024} lds")
    for st in range(G2_NS - 1): dma(st)
    for i in range(NST):
        inflight = min(G2_NS - 2, NST - 1 - i)
        k(f"s_waitcnt vmcnt({8*inflight})\ns_barrier")
        if i + G2_NS - 1 < NST: dma(i + G2_NS - 1)
    if opt.get('zpf', 1):
        srd(k, 16, 4, WS_Z, SZ_Z)
        k(f"""s_lshr_b32 s26, s2, 3
        s_lshl_b32 s26, s26, 17
        s_lshl_b32 s27, s22, 15
        s_add_u32 s26, s26, s27
        s_and_b32 s27, s2, 7
        s_lshl_b32 s27, s27, 11
        s_add_u32 s26, s26, s27
        v_bfe_u32 v{T}, v{L}, 4, 1
        v_and_b32 v{T+1}, 15, v{L}
        v_lshlrev_b32 v{T+1}, 7, v{T+1}
        v_lshl_add_u32 v{T}, v{T}, 14, v{T+1}
        buffer_load_dword v{T+2}, v{T}, s[16:19], s26 offen""")
    k("s_lshr_b32 s26, s2, 3\ns_lshl_b32 s27, s22, 5\ns_add_u32 s26, s26, s27")
    for (lab, nb, back) in opt.get('next', []):
        code_prefetch1(k, lab, nb, back, T, L, 26)
    k("s_endpgm")
    ACC = 0
    FA = [64, 96]; FB = [80, 112]
    RA, RB = 128, 136
    L, T = 138, 140
    BL = 144; VP = 152
    acc = lambda i, st: ACC + 16*i + 4*st
    k("L_g2_mma:")
    k(f"""v_and_b32 v{L}, 63, v0
    s_and_b32 s23, s22, 1
    s_lshr_b32 s24, s22, 1
    s_lshl_b32 s26, s21, 8
    s_lshl_b32 s27, s23, 7
    s_add_u32 s26, s26, s27
    v_lshrrev_b32 v{T}, 4, v{L}
    v_lshl_add_u32 v{T+1}, v{T}, 3, s26
    s_waitcnt lgkmcnt(0)""")
    srd(k, 16, 10, 0, 2048)
    k("s_cmp_eq_u32 s25, 0\ns_cselect_b32 s18, s18, 0")
    for i in range(4):
        k(f"buffer_load_dwordx2 {vr(BL+2*i,2)}, v{T+1}, s[16:19], 0 offen offset:{32*i}")
    for (lab, nb, back) in opt.get('self', []):
        lab2 = k.lab('nopf')
        k(f"s_cmp_ge_u32 s2, 16\ns_cbranch_scc1 {lab2}")
        code_prefetch(k, lab, nb, T+2, L, back=back)
        k(f"{lab2}:")
    k(f"""v_lshrrev_b32 v{T+1}, 2, v{L}
    v_and_b32 v{T+2}, 7, v{T+1}
    s_lshl_b32 s26, s23, 2
    v_xor_b32 v{T+2}, s26, v{T+2}
    v_lshlrev_b32 v{T+2}, 5, v{T+2}
    v_lshl_add_u32 v{T+2}, v{T+1}, 8, v{T+2}
    v_and_b32 v{T+1}, 3, v{L}
    v_lshl_add_u32 v{RA}, v{T+1}, 3, v{T+2}""")
    for t in range(1, 4): k(f"v_xor_b32 v{RA+2*t}, {32*t}, v{RA}")
    for t in range(4): k(f"v_add_u32 v{RA+2*t+1}, 0x10000, v{RA+2*t}")
    k(f"""s_lshl_b32 s26, s24, 12
    s_add_u32 s26, s26, 16384
    v_lshl_add_u32 v{RB}, v{L}, 4, s26
    v_add_u32 v{RB+1}, 0x10000, v{RB}
    v_and_b32 v{T+2}, 15, v{L}
    v_lshlrev_b32 v{T+2}, 6, v{T+2}
    v_lshl_add_u32 v{T+2}, v{T}, 4, v{T+2}
    s_lshl_b32 s26, s20, 13
    s_lshl_b32 s27, s24, 12
    s_add_u32 s26, s26, s27
    s_lshl_b32 s27, s25, 22
    s_add_u32 s26, s26, s27
    s_lshl_b32 s27, s21, 19
    s_add_u32 s26, s26, s27
    s_lshl_b32 s27, s23, 18
    s_add_u32 s26, s26, s27
    v_add_u32 v{VP}, s26, v{T+2}
    s_mov_b32 s30, 0x20000""")
    srd(k, 12, 4, WS_P, SZ_P)
    k("s_waitcnt vmcnt(0)")
    for i in range(4):
        for r in range(4):
            src = BL + 2*i + (r >> 1)
            if r & 1: k(f"v_and_b32 v{acc(i,0)+r}, 0xffff0000, v{src}")
            else: k(f"v_lshlrev_b32 v{acc(i,0)+r}, 16, v{src}")
    def reads(st, ksub, s):
        ring = st % G2_NS
        off = (ring & 1) * 32768 + ksub * 8192
        a = [f"ds_read_b64_tr_b16 {vr(FA[s]+4*j+2*jj,2)}, v{RA+2*j+(ring>>1)} offset:{off + jj*4096}" for j in range(4) for jj in range(2)]
        if (2*st + ksub) % 7 == 3:
            b = [f"ds_read_b64 {vr(FB[s]+4*j+2*th,2)}, v{RB+(ring>>1)} offset:{off + (j>>1)*2048 + th*1024 + (j&1)*8}" for j in range(4) for th in range(2)]
        else:
            b = [f"ds_read_b128 {vr(FB[s]+4*j,4)}, v{RB+(ring>>1)} offset:{off + j*1024}" for j in range(4)]
        return a[:2] + b + a[2:]
    def mfmas(s, first=False):
        if first:
            return [f"{M16} {vr(acc(i,st),4)}, {vr(FA[s]+4*i,4)}, {vr(FB[s]+4*st,4)}, {vr(acc(i,0),4)}" for i in range(4) for st in (1, 2, 3, 0)]
        return [f"{M16} {vr(acc(i,st),4)}, {vr(FA[s]+4*i,4)}, {vr(FB[s]+4*st,4)}, {vr(acc(i,st),4)}" for i in range(4) for st in range(4)]
    k.stamp(1)
    fr = opt.get('frac', 0.7)
    for i in range(NST + 1):
        if i < NST:
            k("s_waitcnt lgkmcnt(0)\ns_barrier")
            if i == 0: k.stamp(2); k.cstamp(8)
            fill = reads(i, 0, 0)
        else:
            k("s_waitcnt lgkmcnt(0)")
            fill = []
        if i > 0: interleave(k, mfmas(1), fill, fr)
        else:
            for x in fill: k(x)
        if i < NST:
            k("s_waitcnt lgkmcnt(0)")
            interleave(k, mfmas(0, i == 0), reads(i, 1, 1), fr)
    k.stamp(3); k.cstamp(9)
    OUT = FA[0]
    for rr in range(2):
        for st in range(4):
            o = OUT + 8*st + 4*rr
            for tp in range(2):
                for r2 in range(2):
                    a_ = acc(2*rr+tp, st) + 2*r2
                    k(f"v_cvt_pk_bf16_f32 v{o+2*tp+r2}, v{a_}, v{a_+1}")
            k(f"buffer_store_dwordx4 {vr(o,4)}, v{VP}, s[12:15], {'s30' if rr else '0'} offen offset:{1024*st} {ST_FL}")
    k.stamp(4)
    k.endpgm()
    k("L_g2_end:\ns_endpgm")
    return k.finalize()

class Stub:
    def __init__(s, name, base, code): s.name = name; s.base = base; s.code = code
    def text(s): return f".globl {s.name}\n.p2align 8\n.type {s.name},@function\n{s.name}:\n" + s.code + "\n"
    def desc(s): return s.base.desc().replace(s.base.name, s.name)
```

```python
from common import *
from gemm import interleave, Stub
from tails import tail_fwd, tail_inv

G1_STAGE = 28672 + 16*1088
G1_SS = 3 * G1_STAGE
G1_SY = G1_SS + 2048
MLP_LDS = G1_SY + 64
ST_FL = "sc0 sc1"
NS2 = 4
STAGES2 = [(0, q, 0) for q in range(3)] + [(j, q, 0) for q in range(3) for j in range(1, 8)] + [(j, 3, 1) for j in range(4)]
SPIN = 400000

def gen_mlp(name, opt={}):
    k = Kernel(name)
    N1, N2 = 16, 28
    k(f"""s_mov_b32 s3, 0
    L_mlp_body:
    s_cmp_ge_u32 s2, 256
    s_cbranch_scc1 L_mlp_end""")
    k.startstamp()
    k(f"""s_load_dwordx2 s[4:5], s[0:1], {A_WS}
    s_load_dwordx2 s[6:7], s[0:1], {A_B1}
    s_load_dwordx4 s[32:35], s[0:1], {A_W2}
    v_readfirstlane_b32 s22, v0
    s_and_b32 s20, s2, 1
    s_bfe_u32 s21, s2, 0x30003
    s_lshl3_add_u32 s20, s20, s21
    s_bfe_u32 s21, s2, 0x20001
    s_lshr_b32 s23, s2, 6
    s_lshl2_add_u32 s21, s21, s23
    s_lshr_b32 s22, s22, 6
    s_cmp_lt_u32 s22, 4
    s_cbranch_scc1 L_mlp_mma""")
    g2ids = """s_mov_b32 s56, s20
    s_and_b32 s57, s21, 7
    s_lshr_b32 s58, s21, 3"""
    L, VA, VB, RS_, D = 1, 2, 4, 8, 12
    k(f"""s_sub_u32 s22, s22, 4
    v_and_b32 v{L}, 63, v0
    s_mul_i32 s25, s21, {16*28672}
    s_mul_i32 s26, s22, 7168
    s_add_u32 s25, s25, s26
    v_lshl_add_u32 v{VA}, v{L}, 4, s25
    s_lshl_b32 s25, s22, 16
    s_lshl_b32 s27, s20, 10
    s_add_u32 s25, s25, s27
    v_lshl_add_u32 v{VB}, v{L}, 4, s25
    v_add_u32 v{VA+1}, 4096, v{VA}
    v_add_u32 v{VB+1}, 0x4000, v{VB}
    v_add_u32 v{VB+2}, 0x8000, v{VB}
    v_add_u32 v{VB+3}, 0xc000, v{VB}
    s_mul_i32 s27, s22, {4*1088}
    s_add_u32 s27, s27, 28672
    s_mov_b32 s10, {SZ_W1}
    s_mov_b32 s11, 0x20000
    s_mov_b32 s14, {SZ_Z}
    s_mov_b32 s15, 0x20000
    s_waitcnt lgkmcnt(0)
    s_add_u32 s8, s4, {WS_W1}
    s_addc_u32 s9, s5, 0
    s_mov_b32 s12, s4
    s_mov_b32 s13, s5""")
    def dma(st):
        ring = (st % 3) * G1_STAGE
        k(f"s_mov_b32 s30, {st*28672}\ns_mov_b32 s31, {st*262144}")
        for j in range(4):
            k(f"s_add_u32 m0, s27, {ring + j*1088}")
            k(f"buffer_load_dwordx4 v{VB+j}, s[12:15], s31 offen lds")
        for j in range(7):
            if j % 4 == 0: k(f"s_add_u32 m0, s26, {ring + (j//4)*4096}")
            k(f"buffer_load_dwordx4 v{VA+j//4}, s[8:11], s30 offen offset:{(j%4)*1024} lds")
    dma(0); dma(1)
    PO, LV, SY = 37, 56, 60
    A2, B2, FO, FV, ZT, SO, DG = 28, 30, 32, 33, 34, 35, 36
    k(g2ids)
    NAT = opt.get('w2nat', 1)
    AN = 64
    if NAT:
        srd(k, 16, 32, 0, 3584*2048)
        k(f"""s_mul_i32 s29, s58, {1792*2048}
        s_and_b32 s30, s22, 1
        s_lshl_b32 s30, s30, 15
        s_add_u32 s29, s29, s30
        s_lshr_b32 s30, s22, 1
        s_lshl_b32 s31, s30, 18
        s_add_u32 s29, s29, s31
        s_lshl_b32 s31, s57, 8
        s_add_u32 s29, s29, s31
        s_mul_i32 s30, s30, {3*65536}
        v_lshrrev_b32 v{AN+4}, 4, v{L}
        v_lshlrev_b32 v{AN+5}, 1, v{AN+4}
        v_xor_b32 v{AN+5}, v{AN+5}, v{L}
        v_and_b32 v{AN+5}, 15, v{AN+5}
        v_lshlrev_b32 v{AN+5}, 4, v{AN+5}
        v_lshl_add_u32 v{AN+5}, v{AN+4}, 11, v{AN+5}
        v_add_u32 v{AN}, s29, v{AN+5}
        v_xor_b32 v{AN+1}, 0x80, v{AN}
        v_add_u32 v{AN+1}, {8192-1024}, v{AN+1}
        v_add_u32 v{AN+2}, {2*(8192-1024)}, v{AN}
        v_add_u32 v{AN+3}, {2*(8192-1024)}, v{AN+1}""")
        for j in range(4): k(f"v_add_u32 v{AN+4+j}, s30, v{AN+j}")
    else:
        srd(k, 16, 4, WS_W2, SZ_W2)
    srd(k, 40, 4, WS_H, SZ_H)
    srd(k, 44, 4, WS_FL, SZ_FL)
    k(f"""v_lshl_add_u32 v{RS_}, v{L}, 4, s27
    v_add_u32 v{RS_+1}, {2*G1_STAGE}, v{RS_}
    s_lshl_b32 s28, s22, 12
    s_and_b32 s29, s22, 1
    s_lshl_b32 s29, s29, 12
    s_lshr_b32 s30, s22, 1
    s_lshl_b32 s31, s30, 15
    s_add_u32 s29, s29, s31
    s_mul_i32 s30, s30, {3*8192}
    s_mul_i32 s31, s58, {56*8192}
    s_add_u32 s29, s29, s31
    s_mul_i32 s31, s57, 917504
    s_add_u32 s31, s31, s29
    v_lshl_add_u32 v{A2}, v{L}, 4, s31
    v_add_u32 v{A2+1}, s30, v{A2}
    s_mul_i32 s31, s56, 917504
    s_add_u32 s31, s31, s29
    v_lshl_add_u32 v{B2}, v{L}, 4, s31
    v_add_u32 v{B2+1}, s30, v{B2}
    s_lshl1_add_u32 s31, s56, s58
    s_lshl3_add_u32 s31, s31, s57
    s_lshl_b32 s31, s31, 7
    v_and_b32 v{PO}, 7, v{L}
    v_lshl_add_u32 v{FO}, v{PO}, 2, s31
    s_lshr_b32 s31, s21, 3
    s_lshl1_add_u32 s31, s20, s31
    s_lshl_b32 s31, s31, 10
    s_and_b32 s30, s21, 7
    s_lshl2_add_u32 s31, s30, s31
    v_lshl_add_u32 v{PO}, v{PO}, 7, s31
    v_mov_b32 v{LV}, 1
    v_mov_b32 v{LV+1}, 2
    v_mov_b32 v{LV+2}, 3
    v_mov_b32 v{SY}, {G1_SY}
    v_mov_b32 v{SY+2}, 0
    v_mov_b32 v{SY+3}, 0
    ds_write_b64 v{SY}, {vr(SY+2,2)}
    s_lshl_b32 s25, s22, 9
    s_add_u32 s25, s25, {G1_SS}
    v_lshl_add_u32 v{SO}, v{L}, 3, s25
    v_and_b32 v{DG}, 3, v{L}
    v_cmp_eq_u32 s[60:61], 1, v{DG}
    v_cmp_eq_u32 s[62:63], 2, v{DG}
    v_cmp_eq_u32 s[64:65], 3, v{DG}""")
    for i in range(N1):
        k(f"s_waitcnt vmcnt({11 if i+1 < N1 else 0})\ns_barrier")
        ring = i % 3
        for j in range(4):
            k(f"ds_read_b128 {vr(D+4*j,4)}, v{RS_+(ring>>1)} offset:{(ring&1)*G1_STAGE + j*1088}")
        if i + 2 < N1: dma(i+2)
        for j in range(4):
            k(f"s_waitcnt lgkmcnt({3-j})")
            for q in range(2):
                A4 = 40 + 8*(j & 1) + 4*q
                k(f"v_mfma_f32_4x4x4_16b_bf16 {vr(A4,4)}, {vr(D+4*j+2*q,2)}, {vr(D+4*j+2*q,2)}, {'0' if (i == 0 and j < 2) else vr(A4,4)}")
    for r in range(0, 8, 2): k(f"v_pk_add_f32 {vr(40+r,2)}, {vr(40+r,2)}, {vr(48+r,2)}")
    for r in range(1, 4):
        k(f"v_cndmask_b32 v40, v40, v{40+r}, s[{58+2*r}:{59+2*r}]\nv_cndmask_b32 v44, v44, v{44+r}, s[{58+2*r}:{59+2*r}]")
    k(f"""v_mov_b32 v41, v44
    ds_write_b64 v{SO}, v[40:41]
    s_waitcnt lgkmcnt(0)
    s_barrier""")
    for j in range(8): k(f"s_xor_b32 s{48+j}, s57, {j}\ns_mul_i32 s{48+j}, s{48+j}, {7*8192}")
    def soff(st):
        j, q, sp = STAGES2[st]
        return f"s_mov_b32 s30, {(14*j+3)*8192}" if sp else f"s_add_u32 s30, s{48+j}, {q*8192}"
    def dmaA(st):
        sp = STAGES2[st][2]
        k(f"s_add_u32 m0, s28, {(st % NS2)*32768}\n{soff(st)}")
        if NAT:
            k("s_lshl_b32 s30, s30, 3")
            for j in range(4): k(f"buffer_load_dwordx4 v{AN+4*sp+j}, s[16:19], s30 offen offset:{j*1024} lds")
        else:
            for j in range(4): k(f"buffer_load_dwordx4 v{A2+sp}, s[16:19], s30 offen offset:{j*1024} lds")
    def dmaB(st):
        sp = STAGES2[st][2]
        k(f"s_add_u32 m0, s28, {(st % NS2)*32768 + 16384}\n{soff(st)}")
        for j in range(4): k(f"buffer_load_dwordx4 v{B2+sp}, s[40:43], s30 offen offset:{j*1024} {ST_FL} lds")
    def poll_issue(): k(f"buffer_load_dword v{FV}, v{FO}, s[44:47], 0 offen {ST_FL}")
    def poll_check(level):
        lp, done = k.lab('spin'), k.lab('ok')
        k(f"""s_setprio 3
        s_mov_b32 s31, {SPIN}
        {lp}:
        v_cmp_gt_u32 vcc, {level}, v{FV}
        s_nop 1
        s_cbranch_vccz {done}
        s_sleep {opt.get('psleep', 4)}""")
        poll_issue()
        k(f"""s_sub_u32 s31, s31, 1
        s_cmp_lg_u32 s31, 0
        s_waitcnt vmcnt(0)
        s_cbranch_scc1 {lp}
        {done}:
        s_setprio 0""")
    def lds_wait(off, val):
        lp, done = k.lab('lspin'), k.lab('lok')
        k(f"""s_mov_b32 s31, {SPIN*16}
        {lp}:
        ds_read_b32 v{SY+1}, v{SY} offset:{off}
        s_waitcnt lgkmcnt(0)
        v_cmp_gt_u32 vcc, {val}, v{SY+1}
        s_nop 1
        s_cbranch_vccz {done}
        s_sleep 2
        s_sub_u32 s31, s31, 1
        s_cmp_lg_u32 s31, 0
        s_cbranch_scc1 {lp}
        {done}:""")
    def publish(lv): k(f"s_mov_b64 exec, 0xff\nbuffer_store_dword v{LV+lv-1}, v{PO}, s[44:47], 0 offen {ST_FL}\ns_mov_b64 exec, -1")
    def wave0(fn):
        lab = k.lab('w0')
        k(f"s_cmp_lg_u32 s22, 0\ns_cbranch_scc1 {lab}")
        fn()
        k(f"{lab}:")
    for st in range(NS2): dmaA(st)
    log = [('B', st) for st in range(NS2) for _ in range(4)]
    def younger(tag):
        idx = max(j for j, t in enumerate(log) if t == tag)
        return len(log) - 1 - idx
    def first():
        k("s_setprio 3")
        lds_wait(0, 4)
        publish(1)
        k("s_setprio 0")
    wave0(first)
    CHK = {10: 2, 17: 3}
    PUB = {0: 2, 2: 3}
    L1AT = opt.get('l1at', 1)
    for i in range(N2):
        nxt = i + NS2 - 1
        k(f"s_waitcnt vmcnt({younger(('B', i))})")
        if i == L1AT:
            wave0(lambda: (poll_issue(), k("s_waitcnt vmcnt(0)"), poll_check(1)))
        if nxt in CHK:
            wave0(lambda: (k("s_waitcnt vmcnt(16)"), poll_check(CHK[nxt])))
        k("s_barrier")
        if i in PUB: wave0(lambda: publish(PUB[i]))
        if i == L1AT:
            for st in range(3, i + NS2 - 1):
                dmaB(st); log += [('B', st)]*4
        if i >= 1 and nxt < N2:
            if nxt + 2 in CHK: wave0(poll_issue)
            dmaA(nxt); log += [('A', nxt)]*4
        if i >= L1AT and nxt < N2:
            dmaB(nxt); log += [('B', nxt)]*4
    k("s_cmp_lg_u32 s3, 0\ns_cbranch_scc1 L_mlp_inv")
    tail_fwd(k, opt)
    k("s_lshr_b32 s26, s2, 3\ns_lshl_b32 s27, s22, 5\ns_add_u32 s26, s26, s27")
    for (lab, nb, back) in opt.get('next', []):
        code_prefetch1(k, lab, nb, back, 2, L, 26)
    k.endpgm()
    k("L_mlp_inv:")
    tail_inv(k, opt)
    k.endpgm()
    ACC = 0
    FA = [112, 156]; FB = [140, 184]
    SS = 200; RA = 204; RB = 210
    BL = 214; L = 228; VS = 229; T = 230; VH = 238; VH6 = 239; SX = 240
    acc = lambda t, st: ACC + 16*t + 4*st
    k("L_mlp_mma:")
    k(g2ids)
    k(f"""v_and_b32 v{L}, 63, v0
    s_and_b32 s23, s22, 1
    s_lshr_b32 s24, s22, 1
    s_mul_i32 s28, s21, 448
    s_lshl_b32 s29, s23, 8
    s_add_u32 s29, s29, s28
    v_lshrrev_b32 v{T}, 4, v{L}
    v_lshl_add_u32 v{T+1}, v{T}, 3, s29
    s_lshl_b32 s29, s23, 5
    s_add_u32 s29, s29, s28
    v_lshl_add_u32 v{T+2}, v{T}, 3, s29
    v_and_b32 v{T+3}, 15, v{L}
    v_and_b32 v{T+4}, 7, v{L}
    v_xor_b32 v{T+4}, v{T+4}, v{T}
    v_lshlrev_b32 v{T+4}, 4, v{T+4}
    v_lshl_add_u32 v{T+4}, v{T+3}, 7, v{T+4}
    s_mul_i32 s28, s23, {7*2048}
    v_add_u32 v{RA}, s28, v{T+4}
    v_xor_b32 v{RA+1}, 64, v{RA}
    v_mul_u32_u24 v{T+4}, {2*1088}, v{T}
    v_lshl_add_u32 v{T+4}, v{T+3}, 3, v{T+4}
    s_lshl_b32 s28, s24, 9
    s_add_u32 s28, s28, 28672
    v_add_u32 v{RB}, s28, v{T+4}
    s_lshl_b32 s28, s24, 8
    s_add_u32 s28, s28, {G1_SS}
    v_lshl_add_u32 v{VS}, v{T+3}, 2, s28""")
    for r in (1, 2):
        k(f"v_add_u32 v{RA+2*r}, {r*G1_STAGE}, v{RA}\nv_add_u32 v{RA+2*r+1}, {r*G1_STAGE}, v{RA+1}\nv_add_u32 v{RB+r}, {r*G1_STAGE}, v{RB}")
    k(f"""s_mul_i32 s28, s20, 112
    s_mul_i32 s29, s21, 7
    s_add_u32 s28, s28, s29
    s_lshl_b32 s28, s28, 13
    s_lshl_b32 s29, s24, 12
    s_add_u32 s28, s28, s29
    s_lshl_b32 s29, s23, 15
    s_add_u32 s29, s29, s28
    v_lshl_add_u32 v{VH}, v{L}, 4, s29
    s_lshl_b32 s29, s23, 10
    s_add_u32 s29, s29, s28
    s_add_u32 s29, s29, {3*8192}
    v_lshl_add_u32 v{VH6}, v{L}, 4, s29
    v_lshrrev_b32 v{T+5}, 2, v{L}
    v_and_b32 v{T+4}, 7, v{T+5}
    s_lshl_b32 s26, s23, 2
    v_xor_b32 v{T+4}, s26, v{T+4}
    v_lshlrev_b32 v{T+4}, 5, v{T+4}
    v_lshl_add_u32 v{T+4}, v{T+5}, 8, v{T+4}
    v_and_b32 v{T+5}, 3, v{L}
    v_lshl_add_u32 v{T+4}, v{T+5}, 3, v{T+4}
    s_lshl_b32 s26, s24, 12
    s_add_u32 s26, s26, 16384
    v_lshl_add_u32 v{T+5}, v{L}, 4, s26
    v_lshlrev_b32 v{T+6}, 6, v{T+3}
    v_lshl_add_u32 v{T+6}, v{T}, 4, v{T+6}
    s_lshl_b32 s26, s56, 13
    s_lshl_b32 s27, s24, 12
    s_add_u32 s26, s26, s27
    s_lshl_b32 s27, s58, 22
    s_add_u32 s26, s26, s27
    s_lshl_b32 s27, s57, 19
    s_add_u32 s26, s26, s27
    s_lshl_b32 s27, s23, 18
    s_add_u32 s26, s26, s27
    v_add_u32 v{T+6}, s26, v{T+6}
    s_lshl_b32 s26, s57, 8
    s_lshl_b32 s27, s23, 7
    s_add_u32 s26, s26, s27
    v_lshl_add_u32 v{T+7}, v{T}, 3, s26
    s_waitcnt lgkmcnt(0)""")
    srd(k, 16, 6, 0, 7168)
    srd(k, 12, 4, WS_H, SZ_H)
    srd(k, 8, 34, 0, 2048)
    k("s_cmp_eq_u32 s58, 0\ns_cselect_b32 s10, s10, 0")
    srd(k, 40, 4, WS_P, SZ_P)
    bias_loads = [f"buffer_load_dwordx2 {vr(BL+2*t,2)}, v{T+1}, s[16:19], 0 offen offset:{32*t}" for t in range(6)]
    bias_loads.append(f"buffer_load_dwordx2 {vr(BL+12,2)}, v{T+2}, s[16:19], 0 offen offset:192")
    def reads(st, ksub, s):
        ring = st % 3
        a = [f"ds_read_b128 {vr(FA[s]+4*t,4)}, v{RA+2*ring+ksub} offset:{t*2048}" for t in range(7)]
        b = [f"ds_read_b64 {vr(FB[s]+4*j+2*hi,2)}, v{RB+ring} offset:{(8*ksub+hi)*1088 + j*128}" for j in range(4) for hi in range(2)]
        return [a[0]] + b + a[1:]
    def mfmas(s, first=False):
        return [f"{M16} {vr(acc(t,st),4)}, {vr(FA[s]+4*t,4)}, {vr(FB[s]+4*st,4)}, {'0' if first else vr(acc(t,st),4)}" for t in range(7) for st in range(4)]
    k.stamp(1)
    fr = opt.get('frac', 0.6)
    for i in range(N1 + 1):
        k("s_waitcnt lgkmcnt(0)\ns_barrier")
        if i == 0: k.stamp(2)
        if i < N1: fill = reads(i, 0, 0) + (bias_loads if i == 12 else [])
        else: fill = [f"ds_read_b32 v{SX+4*st+j}, v{VS} offset:{64*st + 512*j}" for st in range(4) for j in range(4)]
        if i > 0: interleave(k, mfmas(1), fill, fr)
        else:
            for x in fill: k(x)
        if i < N1:
            k("s_waitcnt lgkmcnt(0)")
            interleave(k, mfmas(0, i == 0), reads(i, 1, 1), fr)
    k.stamp(3)
    BF = FA[0]; RSV = SS
    k("s_waitcnt vmcnt(0) lgkmcnt(0)")
    for st in range(4): k(f"v_pk_add_f32 {vr(SX+4*st,2)}, {vr(SX+4*st,2)}, {vr(SX+4*st+2,2)}")
    k(f"v_mov_b32 v{T}, {fhex(1e-5)}")
    for st in range(4): k(f"v_add_f32 v{SS+st}, v{SX+4*st}, v{SX+4*st+1}")
    for st in range(4): k(f"v_fmamk_f32 v{SS+st}, v{SS+st}, {fhex(2/(1024*1024))}, v{T}")
    for st in range(4): k(f"v_rsq_f32 v{SS+st}, v{SS+st}")
    B2L = SX
    for i in range(4):
        k(f"buffer_load_dwordx2 {vr(B2L+2*i,2)}, v{T+7}, s[8:11], 0 offen offset:{32*i}")
    for t in range(7):
        for j in range(2):
            k(f"v_lshlrev_b32 v{BF+4*t+2*j}, 16, v{BL+2*t+j}\nv_and_b32 v{BF+4*t+2*j+1}, 0xffff0000, v{BL+2*t+j}")
    c2 = 2*math.sqrt(2/math.pi)*math.log2(math.e); c1 = c2*0.044715
    al = c1 ** (1/3); cp = c2 / al
    k(f"s_mov_b32 s36, {fhex(al)}\ns_mov_b32 s37, {fhex(al)}\ns_mov_b32 s38, {fhex(cp)}\ns_mov_b32 s39, {fhex(cp)}")
    for st in range(4): k(f"v_mul_f32 v{SS+st}, {fhex(2/1024*al)}, v{SS+st}")
    for j in range(14): k(f"v_pk_mul_f32 {vr(BF+2*j,2)}, {vr(BF+2*j,2)}, s[36:37]")
    OUT = FA[1]; TMP = FB[0]
    FLV = SX + 8
    k(f"v_mov_b32 v{FLV}, 1\nv_mov_b32 v{FLV+1}, {G1_SY}")
    OW = FLV + 2
    k(f"s_lshl_b32 s26, s23, 13\nv_add_u32 v{OW}, s26, v{T+5}\nv_add_u32 v{OW+1}, 0x10000, v{OW}")
    def gelu_group(items):
        n = len(items)
        for j, (a, b, st, o) in enumerate(items):
            sel = "op_sel_hi:[1,0,1]" if st % 2 == 0 else "op_sel:[0,1,0] op_sel_hi:[1,1,1]"
            k(f"v_pk_fma_f32 {vr(a,2)}, {vr(a,2)}, {vr(RSV+(st&2),2)}, {vr(b,2)} {sel}")
        for j, (a, b, st, o) in enumerate(items): k(f"v_pk_fma_f32 {vr(TMP+2*j,2)}, {vr(a,2)}, {vr(a,2)}, s[38:39]")
        for j, (a, b, st, o) in enumerate(items): k(f"v_pk_mul_f32 {vr(TMP+2*j,2)}, {vr(TMP+2*j,2)}, {vr(a,2)}")
        for j in range(2*n): k(f"v_exp_f32 v{TMP+j}, -v{TMP+j}")
        for j in range(n): k(f"v_pk_fma_f32 {vr(TMP+2*j,2)}, {vr(TMP+2*j,2)}, s[36:37], s[36:37]")
        for j in range(2*n): k(f"v_rcp_f32 v{TMP+j}, v{TMP+j}")
        for j, (a, b, st, o) in enumerate(items): k(f"v_pk_mul_f32 {vr(TMP+2*j,2)}, {vr(TMP+2*j,2)}, {vr(a,2)}")
        for j, (a, b, st, o) in enumerate(items): k(f"v_cvt_pk_bf16_f32 v{o}, v{TMP+2*j}, v{TMP+2*j+1}")
    cnt = 0
    lag = opt.get('lag', 3)
    for pr in range(3):
        k(f"s_mov_b32 s30, {pr*8192}")
        for st in range(4):
            o = OUT + 4*(cnt % 6); cnt += 1
            items = [(acc(2*pr+tt, st)+2*j, BF+4*(2*pr+tt)+2*j, st, o+2*tt+j) for tt in range(2) for j in range(2)]
            gelu_group(items)
            k(f"buffer_store_dwordx4 {vr(o,4)}, v{VH}, s[12:15], s30 offen offset:{st*1024} {ST_FL}")
            k(f"ds_write_b128 v{OW+(pr>>1)}, {vr(o,4)} offset:{(pr&1)*32768 + st*1024}")
            if 4*pr + st == 3 + lag:
                k(f"s_waitcnt vmcnt({lag})\ns_mov_b64 exec, 1\nds_add_u32 v{FLV+1}, v{FLV}\ns_mov_b64 exec, -1")
    for st2 in range(2):
        o = OUT + 4*(cnt % 6); cnt += 1
        items = [(acc(6, 2*st2+tt)+2*j, BF+24+2*j, 2*st2+tt, o+2*tt+j) for tt in range(2) for j in range(2)]
        gelu_group(items)
        k(f"buffer_store_dwordx4 {vr(o,4)}, v{VH6}, s[12:15], 0 offen offset:{st2*2048} {ST_FL}")
    k.stamp(4)
    FA2 = [64, 96]; FB2 = [80, 112]
    RA2, RB2, VP = 200, 208, T+6
    acc2 = lambda i, st: 16*i + 4*st
    k(f"v_mov_b32 v{RA2}, v{T+4}")
    for t in range(1, 4): k(f"v_xor_b32 v{RA2+2*t}, {32*t}, v{T+4}")
    k(f"v_mov_b32 v{RB2}, v{T+5}")
    for t in range(4): k(f"v_add_u32 v{RA2+2*t+1}, 0x10000, v{RA2+2*t}")
    k(f"v_add_u32 v{RB2+1}, 0x10000, v{RB2}\ns_mov_b32 s30, 0x20000")
    binit = []
    for i in range(4):
        for r in range(4):
            src = B2L + 2*i + (r >> 1)
            binit.append(f"v_and_b32 v{acc2(i,0)+r}, 0xffff0000, v{src}" if r & 1 else f"v_lshlrev_b32 v{acc2(i,0)+r}, 16, v{src}")
    def reads2(st, ksub, s):
        ring = st % NS2
        off = (ring & 1) * 32768 + ksub * 8192
        a = [f"ds_read_b64_tr_b16 {vr(FA2[s]+4*j+2*jj,2)}, v{RA2+2*j+(ring>>1)} offset:{off + jj*4096}" for j in range(4) for jj in range(2)]
        if STAGES2[st][2]:
            b = [f"ds_read_b64 {vr(FB2[s]+4*j+2*th,2)}, v{RB2+(ring>>1)} offset:{off + (j>>1)*2048 + th*1024 + (j&1)*8}" for j in range(4) for th in range(2)]
        else:
            b = [f"ds_read_b128 {vr(FB2[s]+4*j,4)}, v{RB2+(ring>>1)} offset:{off + j*1024}" for j in range(4)]
        return a[:2] + b + a[2:]
    def mfmas2(s, first=False):
        if first:
            return [f"{M16} {vr(acc2(i,st),4)}, {vr(FA2[s]+4*i,4)}, {vr(FB2[s]+4*st,4)}, {vr(acc2(i,0),4)}" for i in range(4) for st in (1, 2, 3, 0)]
        return [f"{M16} {vr(acc2(i,st),4)}, {vr(FA2[s]+4*i,4)}, {vr(FB2[s]+4*st,4)}, {vr(acc2(i,st),4)}" for i in range(4) for st in range(4)]
    fr = opt.get('frac2', 0.7)
    for i in range(N2 + 1):
        if i < N2:
            if i == 0: k("s_waitcnt vmcnt(6)")
            if i == 2: k("s_waitcnt vmcnt(0)")
            k("s_waitcnt lgkmcnt(0)\ns_barrier")
            if i in (0, 4, 10, 17): k.stamp(5 + (0, 4, 10, 17).index(i))
            fill = reads2(i, 0, 0)
        else:
            k("s_waitcnt lgkmcnt(0)")
            fill = []
        if i > 0: interleave(k, mfmas2(1), fill, fr)
        else:
            for x in fill + binit: k(x)
        if i < N2:
            k("s_waitcnt lgkmcnt(0)")
            interleave(k, mfmas2(0, i == 0), reads2(i, 1, 1), fr)
    k.stamp(9)
    OUT = FA2[0]
    for rr in range(2):
        for st in range(4):
            o = OUT + 8*st + 4*rr
            for tp in range(2):
                for r2 in range(2):
                    a_ = acc2(2*rr+tp, st) + 2*r2
                    k(f"v_cvt_pk_bf16_f32 v{o+2*tp+r2}, v{a_}, v{a_+1}")
            k(f"buffer_store_dwordx4 {vr(o,4)}, v{VP}, s[40:43], {'s30' if rr else '0'} offen offset:{1024*st} {ST_FL}")
    k("s_barrier\ns_waitcnt vmcnt(0)\ns_barrier")
    k.endpgm()
    k("L_mlp_end:\ns_endpgm")
    return k.finalize()
```

```python
from common import *
ST_FL = "sc0 sc1"

class F2R:
    LANE = 1; T0 = 2
    MC = 12; MS = 20; TWC = 28; TWS = 44; M2 = 60
    END = 76

def f2_tables(k, R):
    t = R.T0
    L = R.LANE
    fi, hf, f32, b8, f1k, b4, fe, be, ta = t, t+1, t+2, t+3, t+4, t+5, t+6, t+7, t+8
    k(f"""v_and_b32 v{fi}, 31, v{L}
    v_lshrrev_b32 v{hf}, 5, v{L}
    v_lshrrev_b32 v{fe}, 1, v{fi}
    v_and_b32 v{fe}, 9, v{fe}
    v_lshrrev_b32 v{be}, 2, v{fi}
    v_and_b32 v{be}, 2, v{be}
    v_and_or_b32 v{fe}, v{fi}, 4, v{fe}
    v_or_b32 v{fe}, v{fe}, v{be}
    v_and_b32 v{be}, 1, v{fi}
    v_cvt_f32_u32 v{fi}, v{fi}
    v_cvt_f32_u32 v{hf}, v{hf}
    v_cvt_f32_u32 v{fe}, v{fe}
    v_cvt_f32_u32 v{be}, v{be}
    v_mul_f32 v{f32}, {fhex(1/32)}, v{fi}
    v_mul_f32 v{f1k}, {fhex(1/1024)}, v{fi}
    v_mul_f32 v{fe}, {fhex(1/32)}, v{fe}
    v_mul_f32 v{hf}, 4.0, v{hf}
    v_mul_f32 v{be}, {fhex(0.25)}, v{be}
    v_mul_f32 v{b4}, v{f1k}, v{hf}
    v_mul_f32 v{b8}, v{f32}, v{hf}
    v_fmac_f32 v{be}, v{fe}, v{hf}
    v_add_f32 v{b8}, v{b8}, v{b8}""")
    muls = [16*tt + j for tt in range(2) for j in range(8)]
    trig_table(k, f32, b8, muls, [R.TWC+i for i in range(16)], [R.TWS+i for i in range(16)], ta)
    for i in range(8):
        k(f"v_cvt_pk_bf16_f32 v{R.MC+i}, v{R.TWC+2*i}, v{R.TWC+2*i+1}")
        k(f"v_cvt_pk_bf16_f32 v{R.MS+i}, -v{R.TWS+2*i}, -v{R.TWS+2*i+1}")
    muls = [breg(r) for r in range(16)]
    trig_table(k, fe, be, muls, [R.TWC+i for i in range(16)], [R.TWS+i for i in range(16)], ta)
    for i in range(16):
        k(f"v_cvt_pk_bf16_f32 v{R.M2+i}, v{R.TWC+i}, v{R.TWS+i}")
    trig_table(k, f1k, b4, muls, [R.TWC+i for i in range(16)], [R.TWS+i for i in range(16)], ta)

def slot0_fix(k, R, yr, sn, smask, sdc):
    t = R.T0
    k(f"v_mov_b32 v{t}, s{sn}")
    k(f"v_add_f32 v{t}, s{sn+1}, v{t}")
    k(f"v_mul_f32 v{t}, {fhex(R2)}, v{t}")
    if sdc is not None: k(f"v_readlane_b32 s{sdc}, v{yr}, 0")
    k(f"v_cndmask_b32 v{yr}, v{yr}, v{t}, s[{smask}:{smask+1}]")
    k(f"v_cndmask_b32 v{yr+1}, v{yr+1}, 0, s[{smask}:{smask+1}]")

def z_coop_offset(k, dst, t, t2, srow8):
    k(f"""v_bfe_u32 v{t}, v0, 4, 3
    v_xor_b32 v{t}, v{t}, v0
    v_lshrrev_b32 v{t2}, 2, v{t}
    v_and_b32 v{t}, 3, v{t}
    v_lshl_add_u32 v{dst}, v{t}, 4, s{srow8}
    v_lshl_add_u32 v{dst}, v{t2}, 14, v{dst}""")

def z_unit_addr(k, dst, L, t, swave, base):
    k(f"""v_bfe_u32 v{t}, v{L}, 1, 3
    v_xor_b32 v{t}, s{swave}, v{t}
    v_lshlrev_b32 v{t}, 4, v{t}
    v_lshl_add_u32 v{dst}, v{L}, 7, v{t}
    v_add_u32 v{dst}, {base}, v{dst}
    v_xor_b32 v{dst+1}, 64, v{dst}""")

def row_of_pos(k, d, p, t):
    k(f"""s_and_b32 s{d}, s{p}, 0x700
    s_bfe_u32 s{t}, s{p}, 0x50001
    s_or_b32 s{d}, s{d}, s{t}
    s_and_b32 s{t}, s{p}, 64
    s_lshl1_add_u32 s{d}, s{t}, s{d}
    s_and_b32 s{t}, s{p}, 128
    s_lshr_b32 s{t}, s{t}, 1
    s_or_b32 s{d}, s{d}, s{t}""")

ROWF_LDS = {'x': 32768, 'p': 65536}

def role_rowfwd(k, mode, sid):
    R = F2R
    ninp = 1 if mode == 'x' else 2
    L = R.LANE
    X = 76
    YR = [108, 140]; YI = [124, 156] if mode == 'p' else [92, 124]
    if mode == 'x': YR = [108, 140]
    PK = [X, 12] if mode == 'x' else [X, X+16]
    B0 = 156 if mode == 'x' else 172
    ZG, ZU, TA, RO, DC, LC = B0, B0+2, B0+4, B0+5, B0+6, B0+1
    Z1 = B0 + 8
    ZB = 16384 * ninp
    k(f"""s_load_dwordx2 s[4:5], s[0:1], {A_WS}
    s_load_dwordx2 s[6:7], s[0:1], {A_X}
    v_readfirstlane_b32 s22, v0
    v_and_b32 v{L}, 63, v0
    s_and_b32 s20, s{sid}, 7
    s_lshr_b32 s21, s{sid}, 3
    s_lshl_b32 s20, s20, 5
    s_add_u32 s20, s20, s21
    s_lshl_b32 s21, s20, 6
    s_lshr_b32 s22, s22, 6
    s_lshl_b32 s20, s20, 3
    s_lshl1_add_u32 s20, s22, s20
    s_mul_i32 s24, s22, {4096*ninp}""")
    if mode == 'x':
        row_of_pos(k, 23, 20, 25)
        k(f"""v_lshrrev_b32 v3, 5, v{L}
        v_and_b32 v2, 31, v{L}
        v_lshlrev_b32 v2, 4, v2
        v_lshl_add_u32 v2, v3, 16, v2
        s_lshl_b32 s23, s23, 11
        v_add_u32 v2, s23, v2
        s_waitcnt lgkmcnt(0)""")
        srd(k, 8, 6, 0, 4*MB)
        for i in range(4):
            k(f"s_add_u32 m0, s24, {512*i}\nbuffer_load_dwordx4 v2, s[8:11], 0 offen offset:{512*i} {OPT.get('xnt','')} lds")
        z_coop_offset(k, ZG, 3, 4, 21)
        srd(k, 12, 4, WS_Z, SZ_Z)
    else:
        tab_dma(k, 'f2', True, 49152, 22, 5)
        k(f"""v_lshrrev_b32 v3, 5, v{L}
        v_bfe_u32 v2, v{L}, 2, 3
        v_lshlrev_b32 v2, 17, v2
        v_lshl_add_u32 v2, v3, 6, v2
        v_and_b32 v3, 3, v{L}
        v_lshl_add_u32 v2, v3, 4, v2
        s_lshl_b32 s23, s20, 6
        v_add_u32 v2, s23, v2""")
        z_coop_offset(k, ZG, 3, 4, 21)
        k("s_waitcnt lgkmcnt(0)")
        srd(k, 8, 4, WS_P, SZ_P)
        for i in (0, 4, 1, 5, 2, 6, 3, 7):
            k(f"s_add_u32 m0, s24, {1024*i}\ns_mov_b32 s25, {i*MB}\nbuffer_load_dwordx4 v2, s[8:11], s25 offen lds")
        srd(k, 12, 4, WS_Z, SZ_Z)
        k(f"s_lshl_b32 s23, s22, 10")
        for it in range(4):
            k(f"s_add_u32 m0, s23, {ZB + 4096*it}\ns_mov_b32 s25, {it*MB}\nbuffer_load_dwordx4 v{ZG}, s[12:15], s25 offen lds")
    srd(k, 16, 4, WS_RS, SZ_RS)
    k(f"s_lshl_b32 s23, s20, 2\nv_mov_b32 v{RO}, s23\ns_movk_i32 s30, 0x2000")
    if mode == 'p':
        k(f"buffer_load_dwordx2 {vr(DC,2)}, v{RO}, s[16:19], s30 offen")
    k(f"""v_lshrrev_b32 v2, 5, v{L}
    v_lshlrev_b32 v{TA}, 10, v2
    v_bfe_u32 v2, v{L}, 2, 2
    v_lshl_add_u32 v{TA}, v2, 6, v{TA}
    v_bfe_u32 v2, v{L}, 4, 1
    v_lshl_add_u32 v{TA}, v2, {5 if mode == 'x' else 3}, v{TA}
    v_and_b32 v2, 3, v{L}
    v_lshl_add_u32 v{TA}, v2, {3 if mode == 'x' else 4}, v{TA}
    v_add_u32 v{TA}, s24, v{TA}
    v_lshlrev_b32 v{LC}, 4, v0
    s_mov_b64 s[32:33], 1""")
    z_unit_addr(k, ZU, L, 2, 22, ZB)
    k.stamp(1)
    if mode == 'x': f2_tables(k, R)
    else:
        k(f"v_lshlrev_b32 v5, 4, v{L}\ns_waitcnt vmcnt(13)\ns_barrier")
        tab_read(k, 49152, 5)
    k.stamp(2)
    k(f"s_waitcnt vmcnt({5 if mode == 'p' else 0}) lgkmcnt(0)")
    k.stamp(3)
    xs = [[], []]
    for row in range(2):
        for t in range(2):
            for inp in range(ninp):
                reg = X + inp*16 + row*8 + t*4
                for jj in range(2):
                    k(f"ds_read_b64_tr_b16 {vr(reg+2*jj,2)}, v{TA} offset:{inp*4096 + row*512 + 2048*t + 256*jj}")
                xs[row].append((reg, t))
    nrd = 4 * ninp * 2
    done = 0
    for row in range(2):
        for n, (reg, t) in enumerate(xs[row]):
            done += 2
            k(f"s_waitcnt lgkmcnt({min(15, nrd - done)})")
            for (acc, M) in ((YR[row], R.MC), (YI[row], R.MS)):
                c = "0" if n == 0 else vr(acc, 16)
                k(f"{M32} {vr(acc,16)}, {vr(reg,4)}, {vr(M+4*t,4)}, {c}")
    if mode == 'p':
        k("s_waitcnt vmcnt(0)\ns_barrier")
        for G in range(2):
            for half in range(2):
                k(f"ds_read_b128 {vr(Z1+8*G+4*half,4)}, v{ZU+half} offset:{8192*G}")
    D2 = [YI[0], YI[1]] if False else None
    for row in range(2):
        yr, yi = YR[row], YI[row]
        t = R.T0 + 8
        k(f"v_pk_add_f32 {vr(t,2)}, {vr(yr,2)}, {vr(yr+2,2)}")
        for p in range(2, 8):
            k(f"v_pk_add_f32 {vr(t,2)}, {vr(t,2)}, {vr(yr+2*p,2)}")
        k(f"v_sub_f32 v{t}, v{t}, v{t+1}")
        cmul_pack(k, yr, yi, R.TWC, R.TWS, PK[row], R.T0, 'conj', range(0, 2))
        k(f"v_readlane_b32 s{34+2*row}, v{t}, 0\nv_readlane_b32 s{34+2*row+1}, v{t}, 32")
        cmul_pack(k, yr, yi, R.TWC, R.TWS, PK[row], R.T0, 'conj', range(2, 8))
        if mode == 'p':
            if row == 0: k("s_waitcnt lgkmcnt(0)")
            for d in range(8):
                z = Z1 + 8*(d >> 2) + 4*((d >> 1) & 1) + 2*row + (d & 1)
                k(f"v_lshlrev_b32 v{yr+2*d}, 16, v{z}\nv_and_b32 v{yr+2*d+1}, 0xffff0000, v{z}")
            k(f"v_readlane_b32 s{40+row}, v{yr}, 0")
        for g in range(4):
            c = "0" if (g == 0 and mode == 'x') else vr(yr, 16)
            k(f"{M32} {vr(yr,16)}, {vr(R.M2+4*g,4)}, {vr(PK[row]+4*g,4)}, {c}")
    k.stamp(4)
    OUT = YI[0]
    for row in range(2):
        yr = YR[row]
        t = R.T0
        k(f"v_mov_b32 v{t}, s{34+2*row}")
        k(f"v_add_f32 v{t}, s{34+2*row+1}, v{t}")
        k(f"v_mul_f32 v{t}, {fhex(R2)}, v{t}")
        if mode == 'p': k(f"v_add_f32 v{t}, s{40+row}, v{t}")
        k(f"v_readlane_b32 s{38+row}, v{yr}, 0")
        k(f"v_cndmask_b32 v{yr}, v{yr}, v{t}, s[32:33]")
        k(f"v_cndmask_b32 v{yr+1}, v{yr+1}, 0, s[32:33]")
        for d in range(8):
            o = OUT + 8*(d >> 2) + 4*((d >> 1) & 1) + 2*row + (d & 1)
            k(f"v_cvt_pk_bf16_f32 v{o}, v{yr+2*d}, v{yr+2*d+1}")
    for G in range(2):
        for half in range(2):
            k(f"ds_write_b128 v{ZU+half}, {vr(OUT+8*G+4*half,4)} offset:{8192*G}")
    SS = [R.T0+8, R.T0+9]
    for d in range(8):
        for row in range(2):
            o = OUT + 8*(d >> 2) + 4*((d >> 1) & 1) + 2*row + (d & 1)
            k(f"v_dot2_f32_bf16 v{SS[row]}, v{o}, v{o}, {'0' if d == 0 else 'v%d' % SS[row]}")
    k("s_waitcnt lgkmcnt(0)\ns_barrier")
    CO = YR[0]
    for it in range(4):
        k(f"ds_read_b128 {vr(CO+4*it,4)}, v{LC} offset:{ZB + 4096*it}")
    wave_sum(k, SS)
    for it in range(4):
        k(f"s_mov_b32 s25, {it*MB}\ns_waitcnt lgkmcnt({3-it})\nbuffer_store_dwordx4 {vr(CO+4*it,4)}, v{ZG}, s[12:15], s25 offen {OPT.get('zst', ST_FL)}")
    k.stamp(5)
    t = R.T0
    k(f"""v_mov_b32 v{t+2}, {fhex(1e-5)}
    v_fmamk_f32 v{t}, v{SS[0]}, {fhex(2/(1024*1024))}, v{t+2}
    v_fmamk_f32 v{t+1}, v{SS[1]}, {fhex(2/(1024*1024))}, v{t+2}
    v_rsq_f32 v{t}, v{t}
    v_rsq_f32 v{t+1}, v{t+1}""")
    if mode == 'p':
        k(f"""v_add_f32 v{DC}, s38, v{DC}
        v_add_f32 v{DC+1}, s39, v{DC+1}
        v_subrev_f32 v{DC}, s40, v{DC}
        v_subrev_f32 v{DC+1}, s41, v{DC+1}""")
    else:
        k(f"v_mov_b32 v{DC}, s38\nv_mov_b32 v{DC+1}, s39")
    k(f"""s_mov_b32 exec_lo, 0
    s_mov_b32 exec_hi, 0x80000000
    buffer_store_dwordx2 {vr(t,2)}, v{RO}, s[16:19], 0 offen {ST_FL}
    buffer_store_dwordx2 {vr(DC,2)}, v{RO}, s[16:19], s30 offen {ST_FL}""")
    k.stamp(6)
    k.endpgm()

OPT = {'xnt': 'nt', 'colil': 0, 'wnt': 'nt', 'w1touch': 0, 'w2touch': 1}

def role_w1fft(k, sid):
    R = F2R
    L = R.LANE
    AS = 1040
    X = 76
    YR = [92, 124]; YI = [108, 140]
    PK = 156
    NY = 220
    VO, VL7, VH, TA = 224, 225, 226, 227
    k(f"""s_load_dwordx2 s[4:5], s[0:1], {A_WS}
    s_load_dwordx2 s[6:7], s[0:1], {A_W1}
    v_readfirstlane_b32 s22, v0
    v_and_b32 v{L}, 63, v0
    s_and_b32 s20, s{sid}, 7
    s_lshr_b32 s21, s{sid}, 3
    s_mul_i32 s20, s20, 28
    s_add_u32 s20, s20, s21
    s_lshr_b32 s22, s22, 6
    v_lshrrev_b32 v2, 1, v{L}
    v_mul_u32_u24 v2, 7168, v2
    v_and_b32 v3, 1, v{L}
    v_lshl_add_u32 v2, v3, 4, v2
    s_lshl_b32 s23, s20, 5
    s_mul_i32 s24, s22, {8*32*7168}
    s_add_u32 s23, s23, s24
    v_add_u32 v2, s23, v2
    s_mul_i32 s24, s22, {8*AS}""")
    tab_dma(k, 'f2', True, 33792, 22, 5)
    k("s_waitcnt lgkmcnt(0)")
    srd(k, 8, 6, 0, 3584*2048)
    for j in range(8):
        k(f"s_add_u32 m0, s24, {j*AS}\ns_mov_b32 s25, {j*32*7168}\nbuffer_load_dwordx4 v2, s[8:11], s25 offen {OPT.get('w1nt','')} lds")
    srd(k, 12, 4, WS_W1, SZ_W1)
    k(f"""s_mul_i32 s21, s20, 0x124a
    s_lshr_b32 s21, s21, 16
    s_mul_i32 s23, s21, 14
    s_sub_u32 s23, s20, s23
    s_sub_u32 s24, s23, 1
    s_cmp_eq_u32 s23, 7
    s_cselect_b32 s24, 13, s24
    s_cmp_le_u32 s23, 6
    s_cselect_b32 s23, s23, s24
    s_lshl_b32 s23, s23, 2
    s_add_u32 s23, s23, s22
    s_lshl_b32 s23, s23, 2
    v_lshrrev_b32 v{VH}, 3, v{L}
    v_mul_u32_u24 v{VH}, 28672, v{VH}
    v_and_b32 v{VL7}, 7, v{L}
    s_mul_i32 s25, s21, {16*28672}
    s_lshl_b32 s26, s23, 7
    s_add_u32 s25, s25, s26
    s_and_b32 s27, s23, 7
    s_mov_b64 s[32:33], 1""")
    k(f"""v_lshrrev_b32 v2, 5, v{L}
    v_bfe_u32 v3, v{L}, 2, 2
    v_lshl_add_u32 v2, v2, 3, v3
    v_mul_u32_u24 v{TA}, {AS}, v2
    v_and_b32 v2, 1, v{L}
    v_lshl_add_u32 v{TA}, v2, 7, v{TA}
    v_bfe_u32 v2, v{L}, 4, 1
    v_lshl_add_u32 v{TA}, v2, 6, v{TA}
    v_bfe_u32 v2, v{L}, 1, 1
    v_lshl_add_u32 v{TA}, v2, 5, v{TA}
    s_lshl_b32 s28, s22, 3
    v_add_u32 v{TA}, s28, v{TA}""")
    k.stamp(1)
    k(f"v_lshlrev_b32 v5, 4, v{L}\ns_waitcnt vmcnt(8)\ns_barrier")
    tab_read(k, 33792, 5)
    k.stamp(2)
    k("s_waitcnt vmcnt(0) lgkmcnt(0)\ns_barrier")
    if OPT.get('w2touch'):
        k(f"s_load_dwordx2 s[44:45], s[0:1], {A_W2}\ns_lshl_b32 s28, s{sid}, 15\nv_lshl_add_u32 v228, v0, 7, s28\ns_waitcnt lgkmcnt(0)")
        srd(k, 16, 44, 0, 3584*2048)
        k("buffer_load_dword v229, v228, s[16:19], 0 offen")
    k.stamp(3)
    def rd(T):
        for t in range(2):
            for jj in range(2):
                k(f"ds_read_b64_tr_b16 {vr(X+8*(T&1)+4*t+2*jj,2)}, v{TA} offset:{(16*t+4*jj)*AS + 256*T}")
    def st1(T):
        for t in range(2):
            for (acc, M) in ((YR[T&1], R.MC), (YI[T&1], R.MS)):
                k(f"{M32} {vr(acc,16)}, {vr(X+8*(T&1)+4*t,4)}, {vr(M+4*t,4)}, {'0' if t == 0 else vr(acc,16)}")
    rd(0); rd(1)
    k("s_waitcnt lgkmcnt(4)"); st1(0)
    T0 = R.T0
    for T in range(4):
        if T + 1 < 4:
            k(f"s_waitcnt lgkmcnt(0)")
            st1(T+1)
            if T + 2 < 4: rd(T+2)
        yr, yi = YR[T&1], YI[T&1]
        for rho in range(4):
            for fp in range(2):
                src = vr(yr+4*rho+2*fp, 2); d = vr(NY+2*fp, 2)
                if T == 0 and rho == 0: k(f"v_pk_add_f32 {d}, {src}, 0 op_sel_hi:[1,0]")
                else: k(f"v_pk_add_f32 {d}, {d}, {src}" + (" neg_lo:[0,1] neg_hi:[0,1]" if rho & 1 else ""))
        for rho in range(4):
            ti = 4*T + rho
            bc = lambda base: vr(base + (ti & ~1), 2)
            s2 = "op_sel_hi:[1,0]" if ti % 2 == 0 else "op_sel:[0,1] op_sel_hi:[1,1]"
            s3 = "op_sel_hi:[1,0,1]" if ti % 2 == 0 else "op_sel:[0,1,0] op_sel_hi:[1,1,1]"
            for fp in range(2):
                r = 4*rho + 2*fp; t = T0 + 4*fp
                k(f"v_pk_mul_f32 {vr(t,2)}, {vr(yr+r,2)}, {bc(R.TWC)} {s2}")
                k(f"v_pk_mul_f32 {vr(t+2,2)}, {vr(yi+r,2)}, {bc(R.TWC)} {s2}")
            for fp in range(2):
                r = 4*rho + 2*fp; t = T0 + 4*fp
                k(f"v_pk_fma_f32 {vr(t,2)}, {vr(yi+r,2)}, {bc(R.TWS)}, {vr(t,2)} {s3}")
                k(f"v_pk_fma_f32 {vr(t+2,2)}, {vr(yr+r,2)}, {bc(R.TWS)}, {vr(t+2,2)} {s3} neg_lo:[1,0,0] neg_hi:[1,0,0]")
            for fp in range(2):
                t = T0 + 4*fp
                for j in range(2):
                    k(f"v_cvt_pk_bf16_f32 v{PK+16*(2*fp+j)+ti}, v{t+j}, v{t+2+j}")
    k.stamp(4)
    D2 = [YR[0], YI[0], YR[1], YI[1]]
    for u in range(4):
        k(f"v_readlane_b32 s{34+2*u}, v{NY+u}, 0\nv_readlane_b32 s{35+2*u}, v{NY+u}, 32")
    for u in range(4):
        for g in range(4):
            k(f"{M32} {vr(D2[u],16)}, {vr(R.M2+4*g,4)}, {vr(PK+16*u+4*g,4)}, {'0' if g == 0 else vr(D2[u],16)}")
    k.stamp(5)
    for u in range(4):
        yr = D2[u]; OUT = R.TWC + 8*u
        slot0_fix(k, R, yr, 34+2*u, 32, None)
        for d in range(8):
            k(f"v_cvt_pk_bf16_f32 v{OUT+d}, v{yr+2*d}, v{yr+2*d+1}")
        k(f"""s_add_u32 s30, s27, {u}
        v_xor_b32 v{VO}, s30, v{VL7}
        v_lshl_add_u32 v{VO}, v{VO}, 4, v{VH}
        s_add_u32 s30, s25, {u*128}
        s_add_u32 s31, s25, {u*128 + 8*28672}
        buffer_store_dwordx4 {vr(OUT,4)}, v{VO}, s[12:15], s30 offen {ST_FL}
        buffer_store_dwordx4 {vr(OUT+4,4)}, v{VO}, s[12:15], s31 offen {ST_FL}""")
    k.stamp(6)
    k.endpgm()

def role_wprep(k, sid):
    k(f"""s_load_dwordx2 s[4:5], s[0:1], {A_WS}
    s_load_dwordx4 s[20:23], s[0:1], {A_WR}
    s_load_dwordx2 s[6:7], s[0:1], {A_W1}
    s_bfe_u32 s24, s{sid}, 0x20003
    s_bfe_u32 s25, s{sid}, 0x20005
    s_and_b32 s26, s{sid}, 7
    s_lshr_b32 s27, s{sid}, 7
    v_and_b32 v1, 31, v0
    v_lshrrev_b32 v2, 5, v0
    s_lshl_b32 s28, s26, 8
    s_lshl_b32 s29, s25, 4
    s_add_u32 s28, s28, s29
    s_add_u32 s28, s28, s27
    s_mul_i32 s28, s28, 1026
    s_lshl_b32 s29, s24, 8
    s_add_u32 s28, s28, s29
    s_add_u32 s28, s28, 2
    v_mul_u32_u24 v5, 2052, v2
    v_lshl_add_u32 v5, v1, 3, v5
    v_add_u32 v5, s28, v5
    s_waitcnt lgkmcnt(0)""")
    srd(k, 8, 20, 0, 2048*513*2)
    srd(k, 12, 22, 0, 2048*513*2)
    for q in range(4):
        k(f"s_mov_b32 s30, {64*q*1026}")
        k(f"buffer_load_dwordx2 {vr(8+4*q,2)}, v5, s[8:11], s30 offen {OPT.get('wnt','')}")
        k(f"buffer_load_dwordx2 {vr(10+4*q,2)}, v5, s[12:15], s30 offen {OPT.get('wnt','')}")
    srd(k, 36, 6, 0, 3584*2048)
    k(f"""s_lshr_b32 s34, s{sid}, 3
    s_mul_i32 s34, s34, {32*7168}
    s_mul_i32 s29, s26, 896
    s_add_u32 s34, s34, s29
    v_lshrrev_b32 v47, 3, v0
    v_mul_u32_u24 v47, 7168, v47
    v_and_b32 v4, 7, v0
    v_min_u32 v4, 6, v4
    v_lshl_add_u32 v47, v4, 7, v47""")
    npf = 0
    k.stamp(1)
    srd(k, 16, 4, WS_WT, SZ_WT)
    k(f"""v_and_b32 v3, 7, v1
    v_xor_b32 v3, v3, v2
    v_lshlrev_b32 v3, 4, v3
    v_lshl_add_u32 v3, v1, 9, v3
    s_mov_b32 s30, 0x05040100
    s_mov_b32 s31, 0x07060302""")
    k(f"""v_xor_b32 v41, v2, v0
    v_and_b32 v41, 7, v41
    s_lshl_b32 s28, s27, 12
    s_lshl_b32 s29, s26, 9
    s_add_u32 s28, s28, s29
    s_lshl_b32 s29, s25, 7
    s_add_u32 s28, s28, s29
    v_lshl_add_u32 v41, v41, 4, s28
    v_lshrrev_b32 v40, 3, v0
    s_lshl_b32 s28, s24, 7
    s_add_u32 s28, s28, 1
    v_add_u32 v40, s28, v40
    v_and_b32 v4, 31, v40
    v_lshl_add_u32 v41, v4, 15, v41""")
    for it in range(4):
        k(f"""v_add_u32 v4, {32*it}, v40
        v_bfe_u32 v6, v4, 5, 2
        v_lshl_add_u32 v{42+it}, v6, 13, v41
        v_bfe_u32 v6, v4, 7, 2
        v_lshl_add_u32 v{42+it}, v6, 20, v{42+it}""")
    k("v_lshlrev_b32 v40, 4, v0")
    for q in range(4):
        k(f"s_waitcnt vmcnt({2*(3-q)+npf})")
        for u in range(4):
            k(f"v_perm_b32 v{24+4*u+q}, v{10+4*q+(u>>1)}, v{8+4*q+(u>>1)}, s{30+(u&1)}")
    for u in range(4): k(f"ds_write_b128 v3, {vr(24+4*u,4)} offset:{128*u}")
    k.stamp(3)
    k("s_waitcnt lgkmcnt(0)\ns_barrier")
    for it in range(4): k(f"ds_read_b128 {vr(8+4*it,4)}, v40 offset:{4096*it}")
    for it in range(4):
        k(f"s_waitcnt lgkmcnt({3-it})\nbuffer_store_dwordx4 {vr(8+4*it,4)}, v{42+it}, s[16:19], 0 offen {ST_FL}")
    if OPT.get("w1touch", 1): k("buffer_load_dword v46, v47, s[36:39], s34 offen")
    k.stamp(6)
    k.endpgm()

def role_w1touch(k, sid):
    k(f"""s_load_dwordx2 s[6:7], s[0:1], {A_W1}
    s_lshr_b32 s34, s{sid}, 3
    s_mul_i32 s34, s34, {32*7168}
    s_and_b32 s26, s{sid}, 7
    s_mul_i32 s29, s26, 896
    s_add_u32 s34, s34, s29
    v_lshrrev_b32 v1, 3, v0
    v_mul_u32_u24 v1, 7168, v1
    v_and_b32 v4, 7, v0
    v_min_u32 v4, 6, v4
    v_lshl_add_u32 v1, v4, 7, v1
    s_waitcnt lgkmcnt(0)""")
    srd(k, 8, 6, 0, 3584*2048)
    k("buffer_load_dword v2, v1, s[8:11], s34 offen")
    k.endpgm()

def role_w2copy(k, sid):
    k(f"""s_load_dwordx2 s[4:5], s[0:1], {A_WS}
    s_load_dwordx2 s[6:7], s[0:1], {A_W2}
    v_readfirstlane_b32 s22, v0
    v_and_b32 v1, 63, v0
    s_mul_i32 s28, s{sid}, 28672
    s_lshr_b32 s22, s22, 6
    s_mul_i32 s29, s22, 7168
    s_add_u32 s28, s28, s29
    v_lshl_add_u32 v2, v1, 4, s28
    v_add_u32 v3, 4096, v2
    s_waitcnt lgkmcnt(0)""")
    srd(k, 8, 6, 0, 3584*2048)
    for j in range(7):
        k(f"buffer_load_dwordx4 {vr(16+4*j,4)}, v{2+j//4}, s[8:11], 0 offen offset:{(j%4)*1024} nt")
    srd(k, 12, 4, WS_W2, SZ_W2)
    k(f"""s_mov_b32 s29, 917504
    v_lshrrev_b32 v4, 4, v1
    v_mul_lo_u32 v4, v4, s29
    v_and_b32 v5, 15, v1""")
    for j in range(7):
        k(f"""s_add_u32 s29, s28, {1024*j}
        s_lshr_b32 s30, s29, 11
        s_bfe_u32 s31, s29, 0x1000a
        s_mul_i32 s31, s31, {4*917504}
        s_lshl_b32 s29, s30, 8
        s_add_u32 s31, s31, s29
        s_and_b32 s30, s30, 7
        s_lshl_b32 s30, s30, 1
        v_xor_b32 v{8+j}, s30, v5
        v_lshl_add_u32 v{8+j}, v{8+j}, 4, v4
        v_add_u32 v{8+j}, s31, v{8+j}""")
    for j in range(7):
        k(f"s_waitcnt vmcnt(6)\nbuffer_store_dwordx4 {vr(16+4*j,4)}, v{8+j}, s[12:15], 0 offen {ST_FL}")
    k.endpgm()

def role_pf(targets, zero_flags=False):
    def fn(k, sid):
        if zero_flags:
            lab = k.lab('nz')
            k(f"""s_cmp_ge_u32 s{sid}, {SZ_FL // 4096}
            s_cbranch_scc1 {lab}
            s_load_dwordx2 s[4:5], s[0:1], {A_WS}
            s_lshl_b32 s20, s{sid}, 12
            v_lshl_add_u32 v1, v0, 4, s20
            v_mov_b32 v4, 0
            v_mov_b32 v5, 0
            v_mov_b32 v6, 0
            v_mov_b32 v7, 0
            s_waitcnt lgkmcnt(0)""")
            srd(k, 8, 4, WS_FL, SZ_FL)
            k(f"buffer_store_dwordx4 v[4:7], v1, s[8:11], 0 offen {ST_FL}\n{lab}:")
        k(f"""v_readfirstlane_b32 s22, v0
        v_and_b32 v1, 63, v0
        s_lshr_b32 s20, s{sid}, 3
        s_lshr_b32 s22, s22, 6
        s_lshl2_add_u32 s20, s20, s22""")
        for (lab, nb, back) in targets:
            code_prefetch1(k, lab, nb, back, 2, 1, 20)
        k.e("s_endpgm")
    return fn

ROWI_LDS = 65536
def role_rowinv(k, sid):
    L = 1; T0 = 2
    MR, MI, TWC, TWS, M2 = 12, 20, 28, 44, 60
    ZL = 76
    VR = [92, 124]; VI = [108, 140]
    PK = [156, 172]
    CI = [188, 204]
    PP = 220
    ZG, ZU, RO, XO, DC, KL, PA = 236, 238, 237, 240, 242, 241, 244
    ZB = 32768
    k(f"""s_load_dwordx2 s[4:5], s[0:1], {A_WS}
    s_load_dwordx2 s[6:7], s[0:1], {A_OUT}
    v_readfirstlane_b32 s22, v0
    v_and_b32 v{L}, 63, v0
    s_and_b32 s20, s{sid}, 7
    s_lshr_b32 s21, s{sid}, 3
    s_lshl_b32 s20, s20, 5
    s_add_u32 s20, s20, s21
    s_lshl_b32 s21, s20, 6
    s_lshr_b32 s22, s22, 6
    s_lshl_b32 s20, s20, 3
    s_lshl1_add_u32 s20, s22, s20
    s_lshl_b32 s24, s22, 13
    s_lshl_b32 s23, s22, 10""")
    tab_dma(k, 'inv', False, 49152, 22, 5)
    z_coop_offset(k, ZG, 3, 4, 21)
    k(f"""v_lshrrev_b32 v3, 5, v{L}
    v_bfe_u32 v2, v{L}, 2, 3
    v_lshlrev_b32 v2, 17, v2
    v_lshl_add_u32 v2, v3, 6, v2
    v_and_b32 v3, 3, v{L}
    v_lshl_add_u32 v2, v3, 4, v2
    s_lshl_b32 s26, s20, 6
    v_add_u32 v2, s26, v2
    s_waitcnt lgkmcnt(0)""")
    srd(k, 12, 4, WS_Z, SZ_Z)
    for it in range(4):
        k(f"s_add_u32 m0, s23, {ZB + 4096*it}\ns_mov_b32 s25, {it*MB}\nbuffer_load_dwordx4 v{ZG}, s[12:15], s25 offen lds")
    srd(k, 8, 4, WS_P, SZ_P)
    for i in range(8):
        k(f"s_add_u32 m0, s24, {1024*i}\ns_mov_b32 s25, {i*MB}\nbuffer_load_dwordx4 v2, s[8:11], s25 offen lds")
    srd(k, 16, 4, WS_RS, SZ_RS)
    k(f"""s_lshl_b32 s23, s20, 2
    v_mov_b32 v{RO}, s23
    s_movk_i32 s30, 0x2000
    buffer_load_dwordx2 {vr(DC,2)}, v{RO}, s[16:19], s30 offen""")
    srd(k, 40, 6, 0, 4*MB)
    row_of_pos(k, 23, 20, 25)
    k(f"""s_lshl_b32 s23, s23, 11
    s_mov_b32 s31, 0x10000
    v_and_b32 v2, 15, v{L}
    v_lshl_add_u32 v{XO}, v2, 6, s23
    v_lshrrev_b32 v2, 5, v{L}
    v_lshl_add_u32 v{XO}, v2, 5, v{XO}
    v_lshl_add_u32 v{PA}, v2, 3, s24
    v_bfe_u32 v2, v{L}, 4, 1
    v_lshl_add_u32 v{XO}, v2, 4, v{XO}
    v_bfe_u32 v2, v{L}, 3, 2
    v_lshl_add_u32 v{PA}, v2, 10, v{PA}
    v_and_b32 v2, 7, v{L}
    v_lshl_add_u32 v{PA}, v2, 6, v{PA}
    v_add_u32 v{PA+1}, 0x1000, v{PA}""")
    z_unit_addr(k, ZU, L, 2, 22, ZB)
    k.stamp(1)
    k(f"""v_and_b32 v2, 1, v{L}
    v_cvt_f32_u32 v{KL}, v2
    v_mul_f32 v{KL}, {fhex(-2*R2/512)}, v{KL}
    v_add_f32 v{KL}, {fhex((R2-1)/512)}, v{KL}
    v_cmp_gt_u32 vcc, 32, v{L}
    v_lshlrev_b32 v5, 4, v{L}
    v_cndmask_b32 v{KL}, 0, v{KL}, vcc
    s_waitcnt vmcnt(13)
    s_barrier""")
    tab_read(k, 49152, 5)
    k.stamp(2)
    k("s_waitcnt vmcnt(9) lgkmcnt(0)\ns_barrier")
    k.stamp(3)
    for row in range(2):
        for G in range(2):
            for half in range(2):
                k(f"ds_read_b64 {vr(ZL+8*row+4*G+2*half,2)}, v{ZU+half} offset:{8192*G + 8*row}")
    for row in range(2):
        for G in range(2):
            k(f"s_waitcnt lgkmcnt({6 - 4*row - 2*G})")
            for (acc, M) in ((VR[row], MR), (VI[row], MI)):
                c = "0" if G == 0 else vr(acc, 16)
                k(f"{M32} {vr(acc,16)}, {vr(ZL+8*row+4*G,4)}, {vr(M+4*G,4)}, {c}")
        k(f"v_readlane_b32 s{34+row}, v{ZL+8*row}, 0")
    k("s_lshl_b32 s34, s34, 16\ns_lshl_b32 s35, s35, 16")
    k("s_waitcnt vmcnt(0)")
    k(f"v_mul_f32 v{DC}, {fhex(1/1024)}, v{DC}\nv_mul_f32 v{DC+1}, {fhex(1/1024)}, v{DC+1}")
    def pread(row, dst):
        for sp in range(2):
            for j in range(2):
                o8 = (4096*sp + 512*row + 32*j) // 8
                if o8 + 2 <= 255: k(f"ds_read2_b64 {vr(dst+8*sp+4*j,4)}, v{PA} offset0:{o8} offset1:{o8+2}")
                else: k(f"ds_read2_b64 {vr(dst+8*sp+4*j,4)}, v{PA+1} offset0:{o8-512} offset1:{o8-510}")
    def cinit(row, src):
        U = CI[row]; U2 = T0
        sel = "op_sel:[0,0] op_sel_hi:[1,0]" if row == 0 else "op_sel:[0,1] op_sel_hi:[1,1]"
        for d0 in range(0, 8, 4):
            for d in range(d0, d0+4):
                a = src + d; b = src + 8 + d
                k(f"v_lshlrev_b32 v{U+2*d}, 16, v{a}\nv_and_b32 v{U+2*d+1}, 0xffff0000, v{a}")
                k(f"v_lshlrev_b32 v{U2+2*(d-d0)}, 16, v{b}\nv_and_b32 v{U2+2*(d-d0)+1}, 0xffff0000, v{b}")
            for d in range(d0, d0+4):
                k(f"v_pk_add_f32 {vr(U+2*d,2)}, {vr(U+2*d,2)}, {vr(DC,2)} {sel}")
            for d in range(d0, d0+4):
                k(f"v_pk_add_f32 {vr(U+2*d,2)}, {vr(U+2*d,2)}, {vr(U2+2*(d-d0),2)}")
    pread(0, PP); pread(1, PK[1])
    k("s_waitcnt lgkmcnt(4)"); cinit(0, PP)
    k("s_waitcnt lgkmcnt(0)"); cinit(1, PK[1])
    for row in range(2):
        k(f"v_fmac_f32 v{VR[row]}, s{34+row}, v{KL}")
        for g in range(4):
            cmul_pack(k, VR[row], VI[row], TWC, TWS, PK[row], T0, 'pos', range(2*g, 2*g+2))
            k(f"{M32} {vr(CI[row],16)}, {vr(PK[row]+4*g,4)}, {vr(M2+4*g,4)}, {vr(CI[row],16)}")
    k.stamp(4)
    for row in range(2):
        O = VR[row]
        for d in range(8):
            k(f"v_cvt_pk_bf16_f32 v{O+d}, v{CI[row]+2*d}, v{CI[row]+2*d+1}")
        for d in range(4):
            k(f"v_permlane16_swap_b32 v{O+d}, v{O+4+d}")
        for j in range(2):
            k(f"buffer_store_dwordx4 {vr(O+4*j,4)}, v{XO}, s[40:43], {'s31' if row else '0'} offen offset:{1024*j} {ST_FL}")
    k.stamp(6)
    k.endpgm()

def role_col(k, sid):
    L = 1; T0 = 2
    MA, MBm, TWC, TWS = 12, 28, 44, 60
    WR, WI = 76, 92
    WL = 108
    DR, DI = [124, 228], [140, 156]
    ZL = 156
    ZF = 172
    RS = 204
    OC, OS = 212, 216
    ZO, RO, WO, LW, LR = 220, 221, 222, 223, 224
    PK = 228
    k(f"""s_load_dwordx2 s[4:5], s[0:1], {A_WS}
    v_readfirstlane_b32 s22, v0
    v_and_b32 v3, 31, v0
    v_lshrrev_b32 v4, 5, v0
    v_lshl_add_u32 v5, v4, 7, v3
    s_lshl_b32 s23, s{sid}, 14
    v_and_b32 v{L}, 63, v0
    s_lshr_b32 s22, s22, 6
    s_lshl_b32 s24, s22, 11
    s_add_u32 s25, s23, s24
    v_lshl_add_u32 v{ZO}, v{L}, 4, s25
    s_lshl_b32 s24, s22, 10
    v_lshl_add_u32 v{RO}, v{L}, 3, s24
    s_lshl_b32 s24, s22, 12
    s_add_u32 s25, s23, s24
    v_lshl_add_u32 v{WO}, v{L}, 4, s25
    s_movk_i32 s26, 0x2000
    s_movk_i32 s27, 0x1000
    s_mov_b32 s14, {SZ_Z}
    s_mov_b32 s15, 0x20000
    s_mov_b32 s18, {SZ_RS}
    s_mov_b32 s19, 0x20000""")
    tab_dma(k, 'col', False, 16384, 22, LR)
    k(f"""s_waitcnt lgkmcnt(0)
    s_mov_b32 s12, s4
    s_mov_b32 s13, s5
    s_add_u32 s16, s4, {WS_RS}
    s_addc_u32 s17, s5, 0""")
    for q1 in range(2):
        for ab in range(2):
            k(f"buffer_load_dwordx4 {vr(ZL+8*ab+4*q1,4)}, v{ZO}, s[12:15], {'s26' if ab else '0'} offen offset:{1024*q1}")
    for ab in range(2):
        for q1 in range(2):
            k(f"buffer_load_dwordx2 {vr(RS+4*ab+2*q1,2)}, v{RO}, s[16:19], {'s27' if ab else '0'} offen offset:{512*q1}")
    srd(k, 8, 4, WS_WT, SZ_WT)
    for g in range(4):
        k(f"buffer_load_dwordx4 {vr(WL+4*g,4)}, v{WO}, s[8:11], 0 offen offset:{1024*g}")
    k.stamp(1)
    fs, one, ta = T0+6, T0+7, T0+8
    k(f"""v_lshlrev_b32 v{LW}, 4, v0
    v_cvt_f32_u32 v{fs}, v5
    v_lshlrev_b32 v2, 4, v{L}
    v_mul_f32 v{fs}, {fhex(1/2048)}, v{fs}
    v_mov_b32 v{one}, {fhex(1/64)}""")
    trig_table(k, one, fs, [0, 1, 2, 3], [OC+i for i in range(4)], [OS+i for i in range(4)], ta)
    k("s_waitcnt vmcnt(12)\ns_barrier")
    tab_read(k, 16384, 2)
    k.stamp(2)
    zf = lambda ab, i, part: ZF + 16*ab + 8*i + 4*part
    for q in range(4):
        if q % 2 == 0: k(f"s_waitcnt vmcnt({10 - q})")
        for ab in range(2):
            for i in range(2):
                z = ZL + 8*ab + 2*q + i
                k(f"v_lshlrev_b32 v{zf(ab,i,0)+q}, 16, v{z}\nv_and_b32 v{zf(ab,i,1)+q}, 0xffff0000, v{z}")
    k("s_waitcnt vmcnt(4)")
    k.stamp(3)
    EV, OD = DR[0], DI[0]
    neg = "neg_lo:[1,0,0] neg_hi:[1,0,0]"
    for i in range(2):
        for part in range(2):
            for qq in range(0, 4, 2):
                o = 8*i + 4*part + qq
                k(f"v_pk_mul_f32 {vr(OD+o,2)}, {vr(zf(0,i,part)+qq,2)}, {vr(RS+qq,2)}")
        for part in range(2):
            for qq in range(0, 4, 2):
                o = 8*i + 4*part + qq
                k(f"v_pk_fma_f32 {vr(EV+o,2)}, {vr(zf(1,i,part)+qq,2)}, {vr(RS+4+qq,2)}, {vr(OD+o,2)}")
                k(f"v_pk_fma_f32 {vr(OD+o,2)}, {vr(zf(1,i,part)+qq,2)}, {vr(RS+4+qq,2)}, {vr(OD+o,2)} {neg}")
        for q in range(4):
            k(f"v_cvt_pk_bf16_f32 v{PK+8*i+q}, v{EV+8*i+q}, v{EV+8*i+4+q}")
        k(f"ds_write_b128 v{LW}, {vr(PK+8*i,4)} offset:{(2*i)*4096}")
        cmul_pack(k, OD+8*i, OD+8*i+4, OC, OS, PK+8*i+4, T0, 'conj', range(2))
        k(f"ds_write_b128 v{LW}, {vr(PK+8*i+4,4)} offset:{(2*i+1)*4096}")
    k("s_waitcnt lgkmcnt(0)\ns_barrier")
    k.stamp(4)
    U = ZL
    for g in range(4):
        k(f"ds_read_b128 {vr(U+4*g,4)}, v{LR} offset:{1024*g}")
    def mm(s, data, g, data_is_A, swap):
        for (acc, M) in (((DR[s], MA), (DI[s], MBm)) if not swap else ((DI[s], MA), (DR[s], MBm))):
            c = "0" if g == 0 else vr(acc, 16)
            a, b = (vr(data+4*g,4), vr(M+4*g,4)) if data_is_A else (vr(M+4*g,4), vr(data+4*g,4))
            k(f"{M32} {vr(acc,16)}, {a}, {b}, {c}")
    k("s_waitcnt vmcnt(0)")
    for g in range(4):
        for r in range(4*g, 4*g+4):
            k(f"v_lshlrev_b32 v{WR+r}, 16, v{WL+r}\nv_and_b32 v{WI+r}, 0xffff0000, v{WL+r}")
        k(f"s_waitcnt lgkmcnt({3-g})")
        mm(0, U, g, True, False)
    OP = WL
    for (src, dst, tc, ts, mode, swp, isA) in ((0, 1, TWC, TWS, 'conj', False, False), (1, 0, WR, WI, 'pos', True, True), (0, 1, TWC, TWS, 'pos', True, False)):
        if OPT.get('colil', 1):
            for g in range(4):
                cmul_pack(k, DR[src], DI[src], tc, ts, OP, T0, mode, range(2*g, 2*g+2), swap=swp); mm(dst, OP, g, isA, swp)
        else:
            cmul_pack(k, DR[src], DI[src], tc, ts, OP, T0, mode, swap=swp)
            for g in range(4): mm(dst, OP, g, isA, swp)
    k.stamp(5)
    k(f"""v_add_u32 v{LR}, s24, v{LR}
    s_mov_b32 s36, {fhex(1/2048)}
    s_mov_b32 s37, {fhex(1/2048)}
    s_cmp_eq_u32 s{sid}, 0
    s_cselect_b32 s38, 0, s36
    s_mov_b32 s39, s38""")
    for part, acc in ((1, DI[1]), (0, DR[1])):
        for g in range(4):
            k(f"ds_write_b128 v{LR}, {vr(acc+4*g,4)} offset:{16384 + part*4096 + g*1024}")
    k("s_waitcnt lgkmcnt(0)\ns_barrier")
    O = WR
    for w in (1, 3, 0, 2):
        for part in range(2):
            k(f"ds_read_b128 {vr(O+8*w+4*part,4)}, v{LW} offset:{16384 + w*8192 + part*4096}")
    for i in range(2):
        Qr, Qi = O+16*i+8, O+16*i+12
        k(f"s_waitcnt lgkmcnt({6 - 2*i})")
        Tr, Ti = DR[0] + 8*i, DR[0] + 8*i + 4
        for qq in (0, 2):
            k(f"v_pk_mul_f32 {vr(Tr+qq,2)}, {vr(Qr+qq,2)}, {vr(OC+qq,2)}")
            k(f"v_pk_mul_f32 {vr(Ti+qq,2)}, {vr(Qi+qq,2)}, {vr(OC+qq,2)}")
        for qq in (0, 2):
            k(f"v_pk_fma_f32 {vr(Tr+qq,2)}, {vr(Qi+qq,2)}, {vr(OS+qq,2)}, {vr(Tr+qq,2)} {neg}")
            k(f"v_pk_fma_f32 {vr(Ti+qq,2)}, {vr(Qr+qq,2)}, {vr(OS+qq,2)}, {vr(Ti+qq,2)}")
    for i in range(2):
        Pr, Pi = O+16*i, O+16*i+4
        Tr, Ti = DR[0] + 8*i, DR[0] + 8*i + 4
        k(f"s_waitcnt lgkmcnt({2 - 2*i})")
        for part, (P, T) in enumerate(((Pr, Tr), (Pi, Ti))):
            sc = "s[38:39]" if (i == 0 and part == 1) else "s[36:37]"
            for qq in (0, 2):
                for ab in range(2):
                    z = zf(ab, i, part) + qq
                    k(f"v_pk_fma_f32 {vr(z,2)}, {vr(P+qq,2)}, {sc}, {vr(z,2)}")
            for qq in (0, 2):
                for ab in range(2):
                    z = zf(ab, i, part) + qq
                    k(f"v_pk_fma_f32 {vr(z,2)}, {vr(T+qq,2)}, {sc}, {vr(z,2)} " + (neg if ab else ''))
        for ab in range(2):
            for q in range(4):
                k(f"v_cvt_pk_bf16_f32 v{ZL+8*ab+2*q+i}, v{zf(ab,i,0)+q}, v{zf(ab,i,1)+q}")
                if i == 1 and q % 2 == 1:
                    k(f"buffer_store_dwordx4 {vr(ZL+8*ab+2*q-2,4)}, v{ZO}, s[12:15], {'s26' if ab else '0'} offen offset:{512*(q-1)} {ST_FL}")
    k.stamp(6)
    k.endpgm()
```

```python
import numpy as np, math
def bfbits(x):
    u = np.float32(x).view(np.uint32)
    return int((int(u) + 0x7FFF + ((int(u) >> 16) & 1)) >> 16) & 0xFFFF
def pk(lo, hi): return bfbits(lo) | (bfbits(hi) << 16)
def f32(x): return int(np.float32(x).view(np.uint32))
def cs(num, den):
    num %= den
    a = 2*math.pi*num/den
    c, s = math.cos(a), math.sin(a)
    if abs(c) < 1e-12: c = 0.0
    if abs(s) < 1e-12: s = 0.0
    return c, s
def brow(r, h): return 8*(r >> 2) + 4*h + (r & 3)
def table(kind):
    T = np.zeros((64, 64), np.uint32)
    for l in range(64):
        i, h = l & 31, l >> 5
        if kind == 'f2':
            for t in range(2):
                for q in range(4):
                    a0 = 16*t + 8*h + 2*q
                    c0, s0 = cs(a0*i, 32); c1, s1 = cs((a0+1)*i, 32)
                    T[4*t+q, l] = pk(c0, c1); T[8+4*t+q, l] = pk(-s0, -s1)
            e = ((i >> 1) & 9) | (i & 4) | ((i >> 2) & 2); part = i & 1
            for r in range(16):
                c, s = cs(i*brow(r, h), 1024); T[16+r, l] = f32(c); T[32+r, l] = f32(s)
                c, s = cs(e*brow(r, h) + 8*part, 32); T[48+r, l] = pk(c, s)
        elif kind == 'col':
            for r in range(16):
                c, s = cs(i*brow(r, h), 32); T[r, l] = pk(c, s); T[16+r, l] = pk(-s, c)
                c, s = cs(i*brow(r, h), 1024); T[32+r, l] = f32(c); T[48+r, l] = f32(s)
        elif kind == 'inv':
            p = 16*((i >> 3) & 1) + 8*((i >> 2) & 1) + 4*(i >> 4) + (i & 3)
            for r in range(8):
                c, s = cs(p*brow(r, h), 32); c /= 512; s /= 512
                T[r, l] = pk(c, -s); T[8+r, l] = pk(s, c)
            for r in range(16):
                c, s = cs(p*brow(r, h), 1024); T[16+r, l] = f32(c); T[32+r, l] = f32(s)
                c, s = cs(i*brow(r, h), 32); T[48+r, l] = pk(c, -s)
    return T.reshape(16, 4, 64).transpose(0, 2, 1).reshape(-1)
def table_text(kind):
    v = table(kind)
    s = f".p2align 8\n.type tab_{kind},@object\ntab_{kind}:\n"
    for i in range(0, len(v), 8):
        s += ".long " + ",".join(hex(int(x)) for x in v[i:i+8]) + "\n"
    s += f".size tab_{kind}, {4*len(v)}\n"
    return s
```

```python
from common import *
from rows import z_coop_offset, z_unit_addr, row_of_pos, F2R
ST_FL = "sc0 sc1"
SPIN = 400000
PV, PO3, FO3, ONE, FV3 = 246, 247, 248, 249, 250

def tail_common(k, kind, ZG, ZU, RO, DC):
    L = 1
    k(f"""v_subrev_u32 v0, 256, v0
    s_lshl4_add_u32 s26, s20, s21""")
    tab_dma(k, kind, False, 49152, 22, 5)
    k(f"""s_lshl_b32 s27, s20, 11
    s_lshl2_add_u32 s27, s21, s27
    s_add_u32 s27, s27, 32
    s_lshl_b32 s21, s26, 6
    s_lshl_b32 s20, s26, 3
    s_lshl1_add_u32 s20, s22, s20
    s_lshl_b32 s24, s22, 13
    s_lshl_b32 s23, s22, 10""")
    z_coop_offset(k, ZG, 3, 4, 21)
    for it in range(4):
        k(f"s_add_u32 m0, s23, {32768 + 4096*it}\ns_mov_b32 s25, {it*MB}\nbuffer_load_dwordx4 v{ZG}, s[12:15], s25 offen lds")
    srd(k, 16, 4, WS_RS, SZ_RS)
    srd(k, 8, 4, WS_P, SZ_P)
    k(f"""s_lshl_b32 s23, s20, 2
    v_mov_b32 v{RO}, s23
    s_movk_i32 s30, 0x2000
    buffer_load_dwordx2 {vr(DC,2)}, v{RO}, s[16:19], s30 offen
    v_lshrrev_b32 v3, 5, v{L}
    v_bfe_u32 v2, v{L}, 2, 3
    v_lshlrev_b32 v2, 17, v2
    v_lshl_add_u32 v2, v3, 6, v2
    v_and_b32 v3, 3, v{L}
    v_lshl_add_u32 v2, v3, 4, v2
    s_lshl_b32 s23, s20, 6
    v_add_u32 v{PV}, s23, v2
    v_and_b32 v2, 15, v{L}
    v_lshl_add_u32 v{PO3}, v2, 7, s27
    s_lshl_b32 s23, s26, 7
    s_add_u32 s23, s23, 32
    v_lshl_add_u32 v{FO3}, v2, 2, s23
    v_mov_b32 v{ONE}, 1
    v_lshlrev_b32 v5, 4, v{L}""")
    z_unit_addr(k, ZU, L, 2, 22, 32768)

def tail_sync(k, order, opt):
    lab, lp, done = k.lab('w0'), k.lab('spin'), k.lab('ok')
    k(f"""s_barrier
    s_cmp_lg_u32 s22, 0
    s_cbranch_scc1 {lab}
    s_mov_b64 exec, 0xffff
    buffer_store_dword v{ONE}, v{PO3}, s[44:47], 0 offen {ST_FL}
    s_mov_b64 exec, -1
    s_mov_b32 s31, {SPIN}
    {lp}:
    buffer_load_dword v{FV3}, v{FO3}, s[44:47], 0 offen {ST_FL}
    s_waitcnt vmcnt(0)
    v_cmp_eq_u32 vcc, 0, v{FV3}
    s_nop 1
    s_cbranch_vccz {lab}
    s_sleep {opt.get('psleep3', 2)}
    s_sub_u32 s31, s31, 1
    s_cmp_lg_u32 s31, 0
    s_cbranch_scc1 {lp}
    {lab}:
    s_barrier""")
    for i in order:
        k(f"s_add_u32 m0, s24, {1024*i}\ns_mov_b32 s25, {i*MB}\nbuffer_load_dwordx4 v{PV}, s[8:11], s25 offen {ST_FL} lds")

def tail_fwd(k, opt):
    R = F2R; L = 1
    X = 76; YR = [108, 140]; YI = [124, 156]; PK = [X, X+16]
    ZG, LC, ZU, TA, RO, DC = 172, 173, 174, 176, 177, 178
    Z1 = 180; CI = [196, 212]
    ZB = 32768
    tail_common(k, 'f2', ZG, ZU, RO, DC)
    k(f"""v_lshrrev_b32 v2, 5, v{L}
    v_lshlrev_b32 v{TA}, 10, v2
    v_bfe_u32 v2, v{L}, 2, 2
    v_lshl_add_u32 v{TA}, v2, 6, v{TA}
    v_bfe_u32 v2, v{L}, 4, 1
    v_lshl_add_u32 v{TA}, v2, 3, v{TA}
    v_and_b32 v2, 3, v{L}
    v_lshl_add_u32 v{TA}, v2, 4, v{TA}
    v_add_u32 v{TA}, s24, v{TA}
    v_lshlrev_b32 v{LC}, 4, v0
    s_mov_b64 s[32:33], 1
    s_waitcnt vmcnt(0)
    s_barrier""")
    for G in range(2):
        for half in range(2):
            k(f"ds_read_b128 {vr(Z1+8*G+4*half,4)}, v{ZU+half} offset:{8192*G}")
    tab_read(k, 49152, 5, range(11))
    k("s_waitcnt lgkmcnt(11)")
    tab_read(k, 49152, 5, range(11, 16))
    for row in range(2):
        for d in range(8):
            z = Z1 + 8*(d >> 2) + 4*((d >> 1) & 1) + 2*row + (d & 1)
            k(f"v_lshlrev_b32 v{CI[row]+2*d}, 16, v{z}\nv_and_b32 v{CI[row]+2*d+1}, 0xffff0000, v{z}")
        k(f"v_readlane_b32 s{40+row}, v{CI[row]}, 0")
    k("s_waitcnt lgkmcnt(0)")
    k.stamp(1)
    tail_sync(k, (0, 1, 4, 5, 2, 3, 6, 7), opt)
    k.stamp(2)
    for t in range(2):
        k(f"s_waitcnt vmcnt({4 - 4*t})")
        for row in range(2):
            for inp in range(2):
                reg = X + inp*16 + row*8 + t*4
                for jj in range(2):
                    k(f"ds_read_b64_tr_b16 {vr(reg+2*jj,2)}, v{TA} offset:{inp*4096 + row*512 + 2048*t + 256*jj}")
        n = 0
        for row in range(2):
            for inp in range(2):
                n += 2
                k(f"s_waitcnt lgkmcnt({8 - n})")
                reg = X + inp*16 + row*8 + t*4
                for (acc, M) in ((YR[row], R.MC), (YI[row], R.MS)):
                    c = "0" if (t == 0 and inp == 0) else vr(acc, 16)
                    k(f"{M32} {vr(acc,16)}, {vr(reg,4)}, {vr(M+4*t,4)}, {c}")
    k.stamp(3)
    for row in range(2):
        yr, yi = YR[row], YI[row]
        cmul_pack(k, yr, yi, R.TWC, R.TWS, PK[row], R.T0, 'conj')
        for g in range(4):
            k(f"{M32} {vr(CI[row],16)}, {vr(R.M2+4*g,4)}, {vr(PK[row]+4*g,4)}, {vr(CI[row],16)}")
    for row in range(2):
        yr = YR[row]; t = R.T0 + 2*row
        k(f"v_pk_add_f32 {vr(t,2)}, {vr(yr,2)}, {vr(yr+2,2)}")
        for p in range(2, 8): k(f"v_pk_add_f32 {vr(t,2)}, {vr(t,2)}, {vr(yr+2*p,2)}")
        k(f"v_sub_f32 v{t}, v{t}, v{t+1}")
    for row in range(2):
        t = R.T0 + 2*row
        k(f"v_readlane_b32 s{34+row}, v{t}, 32")
    for row in range(2):
        t = R.T0 + 2*row
        k(f"v_add_f32 v{t}, s{34+row}, v{t}\nv_mul_f32 v{t}, {fhex(R2)}, v{t}\nv_add_f32 v{t}, s{40+row}, v{t}")
    OUT = YI[0]
    for row in range(2):
        yr = CI[row]; t = R.T0 + 2*row
        k(f"v_readlane_b32 s{38+row}, v{yr}, 0")
        k(f"v_cndmask_b32 v{yr}, v{yr}, v{t}, s[32:33]")
        k(f"v_cndmask_b32 v{yr+1}, v{yr+1}, 0, s[32:33]")
        for d in range(8):
            o = OUT + 8*(d >> 2) + 4*((d >> 1) & 1) + 2*row + (d & 1)
            k(f"v_cvt_pk_bf16_f32 v{o}, v{yr+2*d}, v{yr+2*d+1}")
    for G in range(2):
        for half in range(2):
            k(f"ds_write_b128 v{ZU+half}, {vr(OUT+8*G+4*half,4)} offset:{8192*G}")
    SS = [R.T0+8, R.T0+9]
    for d in range(8):
        for row in range(2):
            o = OUT + 8*(d >> 2) + 4*((d >> 1) & 1) + 2*row + (d & 1)
            k(f"v_dot2_f32_bf16 v{SS[row]}, v{o}, v{o}, {'0' if d == 0 else 'v%d' % SS[row]}")
    k("s_waitcnt lgkmcnt(0)\ns_barrier")
    CO = YR[0]
    for it in range(4):
        k(f"ds_read_b128 {vr(CO+4*it,4)}, v{LC} offset:{ZB + 4096*it}")
    wave_sum(k, SS)
    for it in range(4):
        k(f"s_mov_b32 s25, {it*MB}\ns_waitcnt lgkmcnt({3-it})\nbuffer_store_dwordx4 {vr(CO+4*it,4)}, v{ZG}, s[12:15], s25 offen {ST_FL}")
    t = R.T0
    k(f"""v_mov_b32 v{t+2}, {fhex(1e-5)}
    v_fmamk_f32 v{t}, v{SS[0]}, {fhex(2/(1024*1024))}, v{t+2}
    v_fmamk_f32 v{t+1}, v{SS[1]}, {fhex(2/(1024*1024))}, v{t+2}
    v_rsq_f32 v{t}, v{t}
    v_rsq_f32 v{t+1}, v{t+1}
    v_add_f32 v{DC}, s38, v{DC}
    v_add_f32 v{DC+1}, s39, v{DC+1}
    v_subrev_f32 v{DC}, s40, v{DC}
    v_subrev_f32 v{DC+1}, s41, v{DC+1}
    s_mov_b32 exec_lo, 0
    s_mov_b32 exec_hi, 0x80000000
    buffer_store_dwordx2 {vr(t,2)}, v{RO}, s[16:19], 0 offen {ST_FL}
    buffer_store_dwordx2 {vr(DC,2)}, v{RO}, s[16:19], s30 offen {ST_FL}
    s_mov_b64 exec, -1""")
    k.stamp(4)

def tail_inv(k, opt):
    L = 1; T0 = 2
    MR, MI, TWC, TWS, M2 = 12, 20, 28, 44, 60
    ZL = 76; VR = [92, 124]; VI = [108, 140]; PK = [156, 172]; CI = [188, 204]
    ZG, RO, ZU, XO, KL, DC, PA = 236, 237, 238, 240, 241, 242, 244
    k(f"s_load_dwordx2 s[6:7], s[0:1], {A_OUT}")
    tail_common(k, 'inv', ZG, ZU, RO, DC)
    row_of_pos(k, 23, 20, 25)
    k(f"""s_lshl_b32 s23, s23, 11
    s_mov_b32 s29, 0x10000
    v_and_b32 v2, 15, v{L}
    v_lshl_add_u32 v{XO}, v2, 6, s23
    v_lshrrev_b32 v2, 5, v{L}
    v_lshl_add_u32 v{XO}, v2, 4, v{XO}
    v_lshl_add_u32 v{PA}, v2, 5, s24
    v_bfe_u32 v2, v{L}, 4, 1
    v_lshl_add_u32 v{XO}, v2, 5, v{XO}
    v_bfe_u32 v2, v{L}, 3, 2
    v_lshl_add_u32 v{PA}, v2, 10, v{PA}
    v_and_b32 v2, 7, v{L}
    v_lshl_add_u32 v{PA}, v2, 6, v{PA}
    v_and_b32 v2, 1, v{L}
    v_cvt_f32_u32 v{KL}, v2
    v_mul_f32 v{KL}, {fhex(-2*R2/512)}, v{KL}
    v_add_f32 v{KL}, {fhex((R2-1)/512)}, v{KL}
    v_cmp_gt_u32 vcc, 32, v{L}
    s_waitcnt lgkmcnt(0)
    v_cndmask_b32 v{KL}, 0, v{KL}, vcc""")
    srd(k, 40, 6, 0, 4*MB)
    k("s_waitcnt vmcnt(0)\ns_barrier")
    for row in range(2):
        for G in range(2):
            for half in range(2):
                k(f"ds_read_b64 {vr(ZL+8*row+4*G+2*half,2)}, v{ZU+half} offset:{8192*G + 8*row}")
    tab_read(k, 49152, 5, range(4))
    k(f"v_mul_f32 v{DC}, {fhex(1/1024)}, v{DC}\nv_mul_f32 v{DC+1}, {fhex(1/1024)}, v{DC+1}")
    for row in range(2):
        for r in range(16): k(f"v_mov_b32 v{CI[row]+r}, v{DC+row}")
    k("s_waitcnt lgkmcnt(0)")
    tab_read(k, 49152, 5, range(4, 16))
    for row in range(2):
        for G in range(2):
            for (acc, M) in ((VR[row], MR), (VI[row], MI)):
                c = "0" if G == 0 else vr(acc, 16)
                k(f"{M32} {vr(acc,16)}, {vr(ZL+8*row+4*G,4)}, {vr(M+4*G,4)}, {c}")
        k(f"v_readlane_b32 s{34+row}, v{ZL+8*row}, 0")
    k("s_lshl_b32 s34, s34, 16\ns_lshl_b32 s35, s35, 16\ns_waitcnt lgkmcnt(0)")
    def finish():
        for row in range(2):
            k(f"v_fmac_f32 v{VR[row]}, s{34+row}, v{KL}")
            cmul_pack(k, VR[row], VI[row], TWC, TWS, PK[row], T0, 'pos')
            for g in range(4):
                k(f"{M32} {vr(CI[row],16)}, {vr(PK[row]+4*g,4)}, {vr(M2+4*g,4)}, {vr(CI[row],16)}")
    k.stamp(1)
    tail_sync(k, range(8), opt)
    k.stamp(2)
    finish()
    k("s_waitcnt vmcnt(0)")
    k.stamp(3)
    PP = 12
    for row in range(2):
        for sp in range(2):
            for j in range(2):
                k(f"ds_read_b128 {vr(VI[row]+8*sp+4*j,4)}, v{PA} offset:{4096*sp + 512*row + 16*j}")
    for row in range(2):
        k(f"s_waitcnt lgkmcnt({4 - 4*row})")
        U = PP
        for sp in range(2):
            for d in range(8):
                a = VI[row] + 8*sp + d
                k(f"v_lshlrev_b32 v{U+16*sp+2*d}, 16, v{a}\nv_and_b32 v{U+16*sp+2*d+1}, 0xffff0000, v{a}")
        for sp in range(2):
            for d in range(8):
                k(f"v_pk_add_f32 {vr(CI[row]+2*d,2)}, {vr(CI[row]+2*d,2)}, {vr(U+16*sp+2*d,2)}")
        O = VR[row]
        for d in range(8):
            k(f"v_cvt_pk_bf16_f32 v{O + 4*((d>>1)&1) + 2*(d>>2) + (d&1)}, v{CI[row]+2*d}, v{CI[row]+2*d+1}")
        for d in range(4):
            k(f"v_permlane16_swap_b32 v{O+d}, v{O+4+d}")
        for j in range(2):
            k(f"buffer_store_dwordx4 {vr(O+4*j,4)}, v{XO}, s[40:43], {'s29' if row else '0'} offen offset:{1024*j} {ST_FL}")
    k.stamp(4)
```
